```python
import torch

def _softmax(x, axis=-1):
    return torch.softmax(x, dim=axis)
def _gelu(x):
    return torch.nn.functional.gelu(x, approximate="tanh")
def _silu(x):
    return torch.nn.functional.silu(x)
def _sigmoid(x):
    return torch.sigmoid(x)
def _layernorm(x, axis=-1, eps=1e-5):
    m = x.mean(dim=axis, keepdim=True)
    v = x.var(dim=axis, keepdim=True, unbiased=False)
    return (x - m) / torch.sqrt(v + eps)
def _scatter_add(tgt, idx, src, axis=0):
    return tgt.clone().index_add_(axis, idx, src)
def _segment_sum(src, seg, n):
    out = torch.zeros((n,) + src.shape[1:], dtype=src.dtype)
    return out.index_add_(0, seg, src)
def _pad(x, pw):
    flat = tuple(v for pair in reversed(pw) for v in pair)
    return torch.nn.functional.pad(x, flat)

kernel_name = 'sequential_preLN__sliding_block_cached__glu_gated_swiglu__decode'

def setup_inputs():

    _w = (lambda a: (lambda t: t.to(torch.bfloat16) if t.is_floating_point() else t)(torch.as_tensor(a)))
    def _A_setup():
        B, Sq, D = 1, 1, 512
        Hq, Hkv, Sk, Dh = 32, 8, 32768, 128
        assert Hq % Hkv == 0, (Hq, Hkv)
        return {
            "x": _w((lambda *s: torch.randn(*s, dtype=torch.bfloat16) * 0.05)(B, Sq, D)),
            "k_cache": _w((lambda *s: torch.randn(*s, dtype=torch.bfloat16) * 1.6)(B, Hkv, Sk, Dh)),
            "v_cache": _w((lambda *s: torch.randn(*s, dtype=torch.bfloat16) * 0.8)(B, Hkv, Sk, Dh)),
            "wq": _w((lambda *s: torch.randn(*s, dtype=torch.bfloat16) * 1.6)(D, Hq * Dh) * (D ** -0.5)),
            "wo": _w((lambda *s: torch.randn(*s, dtype=torch.bfloat16) * 0.8)(Hq * Dh, D) * ((Hq * Dh) ** -0.5)),
        }
    _A_in = _A_setup()

    def _B_setup():
        B, S, D, F = 1, 1, 512, 1792
        return {
            "x": _w((lambda *s: torch.randn(*s, dtype=torch.bfloat16) * 0.05)(B, S, D)),
            "w1": _w((lambda *s: torch.randn(*s, dtype=torch.bfloat16) * 0.4)(D, F) * (2.0 / D) ** 0.5),
            "w3": _w((lambda *s: torch.randn(*s, dtype=torch.bfloat16) * 0.4)(D, F) * (2.0 / D) ** 0.5),
            "w2": _w((lambda *s: torch.randn(*s, dtype=torch.bfloat16) * 0.4)(F, D) * (2.0 / F) ** 0.5),
        }
    _B_in = _B_setup()

    return {
        "A_x": _A_in["x"],
        "A_k_cache": _A_in["k_cache"],
        "A_v_cache": _A_in["v_cache"],
        "A_wq": _A_in["wq"],
        "A_wo": _A_in["wo"],
        "B_x": _B_in["x"],
        "B_w1": _B_in["w1"],
        "B_w3": _B_in["w3"],
        "B_w2": _B_in["w2"],
    }

def reference(A_x, A_k_cache, A_v_cache, A_wq, A_wo, B_x, B_w1, B_w3, B_w2):
    def _A_ref(x, k_cache, v_cache, wq, wo):
        B, Sq, D = x.shape
        Hq, Dh = 32, 128
        Hkv, Sk = k_cache.shape[1], k_cache.shape[2]
        W = min(4096, max(256, Sk // 4))
        rep = Hq // Hkv
        q = (lambda x, *d: x.permute(*d))((x @ wq).reshape(B, Sq, Hq, Dh), 0, 2, 1, 3)
        k = (lambda x, n, axis: torch.repeat_interleave(x, n, dim=axis))(k_cache[:, :, Sk - W:, :], rep, axis=1)
        v = (lambda x, n, axis: torch.repeat_interleave(x, n, dim=axis))(v_cache[:, :, Sk - W:, :], rep, axis=1)
        scores = torch.einsum("bhqd,bhkd->bhqk", q, k) * (Dh ** -0.5)
        p = _softmax(scores, axis=-1)
        o = torch.einsum("bhqk,bhkd->bhqd", p, v)
        return (lambda x, *d: x.permute(*d))(o, 0, 2, 1, 3).reshape(B, Sq, Hq * Dh) @ wo

    def _B_ref(x, w1, w3, w2):
        gate = torch.einsum("bsd,df->bsf", x, w1)
        up = torch.einsum("bsd,df->bsf", x, w3)
        h = _silu(gate) * up
        out = torch.einsum("bsf,fd->bsd", h, w2)
        return out

    x = A_x
    h = x + _A_ref(_layernorm(x, axis=-1), A_k_cache, A_v_cache, A_wq, A_wo)
    h2 = h + _B_ref(_layernorm(h, axis=-1), B_w1, B_w3, B_w2)
    return h2
```

```python
NAME = "sequential_preLN__sliding_block_cached__glu_gated_swiglu__decode"
KERNARG_COMMENT = open("cdna_kernels/%s.s.ref" % NAME).read().split("; Override launch")[0]

class Asm:
    def __init__(self):
        self.lines = []
        self.nlab = 0
    def __call__(self, s):
        for l in s.split("\n"):
            l = l.strip()
            if not l: continue
            if l.endswith(":") or l.startswith("."):
                self.lines.append(l)
            else:
                self.lines.append("    " + l)
    def label(self, base="L"):
        self.nlab += 1
        return "%s_%d" % (base, self.nlab)
    def text(self):
        return "\n".join(self.lines) + "\n"

def kernel_begin(name):
    return f""".globl {name}
.p2align 8
.type {name},@function
{name}:
"""

def kd(name, vgpr, sgpr=102, accum=None):
    if accum is None:
        accum = min(256, (vgpr + 3) // 4 * 4)
    return f""".section .rodata,"a"
.p2align 6
.amdhsa_kernel {name}
  .amdhsa_next_free_vgpr {vgpr}
  .amdhsa_next_free_sgpr {sgpr}
  .amdhsa_accum_offset {accum}
  .amdhsa_group_segment_fixed_size 0
  .amdhsa_kernarg_size 96
  .amdhsa_user_sgpr_count 2
  .amdhsa_user_sgpr_kernarg_segment_ptr 1
  .amdhsa_system_sgpr_workgroup_id_x 1
  .amdhsa_float_denorm_mode_32 3
.end_amdhsa_kernel
"""

def single_file(body, grid, block, lds, vgpr, sgpr=102, accum=None):
    name = NAME + "_kernel"
    s = KERNARG_COMMENT
    s += f"; @launch grid=({grid},1,1) block=({block},1,1) lds={lds}\n"
    s += '.amdgcn_target "amdgcn-amd-amdhsa--gfx950"\n.text\n'
    s += kernel_begin(name) + body + "    s_endpgm\n" + kd(name, vgpr, sgpr, accum)
    return s

def multi_file(kernels):
    s = KERNARG_COMMENT
    for k in kernels:
        s += f"; @launch kernel={k['name']} grid=({k['grid']},1,1) block=({k['block']},1,1) lds={k['lds']}\n"
    s += '.amdgcn_target "amdgcn-amd-amdhsa--gfx950"\n'
    seen = set()
    for k in kernels:
        if k['name'] in seen: continue
        seen.add(k['name'])
        s += ".text\n" + kernel_begin(k['name']) + k['body'] + "    s_endpgm\n" + kd(k['name'], k['vgpr'], k.get('sgpr', 102), k.get('accum'))
    return s

def srd(a, d, lo, hi, nbytes):
    a(f"""s_mov_b32 s{d}, s{lo}
    s_and_b32 s{d+1}, s{hi}, 0xffff
    s_mov_b32 s{d+2}, {nbytes}
    s_mov_b32 s{d+3}, 0x20000""")
```

```python
import re
TRANS = ("v_exp_f32","v_log_f32","v_rcp_f32","v_rsq_f32","v_sqrt_f32","v_sin_f32","v_cos_f32","v_rcp_iflag_f32")
def regs(tok):
    tok = tok.strip()
    tok = tok.lstrip("-").strip("|")
    m = re.match(r"^(?:abs|neg)\((.*)\)$", tok)
    if m: tok = m.group(1)
    m = re.match(r"^([vsa])(\d+)$", tok)
    if m: return {(m.group(1), int(m.group(2)))}
    m = re.match(r"^([vsa])\[(\d+):(\d+)\]$", tok)
    if m: return {(m.group(1), i) for i in range(int(m.group(2)), int(m.group(3))+1)}
    if tok == "vcc": return {("s",106),("s",107)}
    if tok == "vcc_lo": return {("s",106)}
    if tok == "vcc_hi": return {("s",107)}
    if tok == "exec": return {("s",126),("s",127)}
    if tok == "exec_lo": return {("s",126)}
    if tok == "exec_hi": return {("s",127)}
    if tok == "m0": return {("s",124)}
    return set()
def V(s): return {r for r in s if r[0] in "va"}
def S(s): return {r for r in s if r[0] == "s"}
class I: pass
def parse(line):
    code = line.split(";")[0].strip()
    p = code.split(None, 1)
    op = p[0]; rest = p[1] if len(p) > 1 else ""
    toks = [t.strip() for t in re.split(r",(?![^\[]*\])", rest)] if rest else []
    ops = []; mods = ""
    for k, t in enumerate(toks):
        q = t.split(None, 1)
        ops.append(q[0])
        if len(q) > 1: mods += " " + q[1]
    i = I(); i.op = op; i.ops = ops; i.mods = mods
    base = re.sub(r"_(e32|e64|dpp|sdwa)$", "", op)
    i.base = base
    i.w = set(); i.r = set(); i.kind = "other"
    i.dpp = ("row_" in mods or "quad_perm" in mods or "wave_" in mods)
    i.dppsrc = set()
    R = [regs(o) for o in ops]
    if base.startswith("v_mfma"):
        i.kind = "mfma"; i.D, i.A, i.B, i.C = R[0], R[1], R[2], R[3]
        i.w = set(R[0]); i.r = R[1] | R[2] | R[3]
        assert "16x16x32" in base or "16x16x16" in base, base
    elif base.startswith("v_"):
        i.kind = "valu"
        if base.startswith("v_permlane") and "swap" in base:
            i.w = R[0] | R[1]; i.r = R[0] | R[1]; i.perm = True
        elif base in ("v_add_co_u32","v_sub_co_u32","v_subrev_co_u32","v_addc_co_u32","v_subb_co_u32"):
            i.w = R[0] | R[1]; i.r = set().union(*R[2:])
        elif base == "v_nop":
            pass
        else:
            i.w = set(R[0]); i.r = set().union(*R[1:]) if len(R) > 1 else set()
            if base.startswith(("v_fmac","v_dot2c","v_writelane","v_pk_fmac")): i.r |= R[0]
            if base.startswith("v_cmpx"): i.w |= regs("exec")
        if i.dpp: i.dppsrc = V(i.r) | V(R[0])
    elif base.startswith(("buffer_","global_")):
        i.kind = "vmem"
        if base.startswith(("buffer_inv","buffer_wbl2")): pass
        elif "store" in base or ("atomic" in base):
            if base.startswith("buffer_"):
                i.data = R[0]; i.r = set().union(*R)
            else:
                i.data = R[1]; i.r = set().union(*R)
            if "atomic" in base and "sc0" in mods: i.w = set(R[0])
            i.wide = base.endswith(("x3","x4"))
        else:
            if " lds" in mods or "_lds_" in base:
                i.r = set().union(*R) | regs("m0"); i.ldsdma = True
            else:
                i.w = set(R[0]); i.r = set().union(*R[1:])
    elif base.startswith("ds_"):
        i.kind = "ds"
        if base.startswith(("ds_read","ds_bpermute","ds_permute","ds_swizzle")):
            i.w = set(R[0]); i.r = set().union(*R[1:])
        else:
            i.r = set().union(*R)
    elif base.startswith("s_"):
        i.kind = "salu"
        if base.startswith(("s_cmp","s_cbranch","s_branch","s_waitcnt","s_barrier","s_nop","s_setprio","s_sleep","s_endpgm","s_bitcmp")):
            i.r = set().union(*R) if R else set()
        else:
            i.w = set(R[0]) if R else set(); i.r = set().union(*R[1:]) if len(R) > 1 else set()
            if "saveexec" in base: i.w |= regs("exec")
    return i

def need(state, i):
    n = 0
    for (kind, rs, age, extra) in state:
        req = 0
        if kind == "valu_v":
            if i.kind == "valu":
                if i.dppsrc & rs: req = max(req, 2)
                if i.base in ("v_readfirstlane_b32","v_readlane_b32") and (i.r & rs): req = max(req, 1)
                if getattr(i, "perm", False) and (i.r & rs): req = max(req, 2)
            if i.kind == "mfma" and (i.r & rs): req = max(req, 2)
        elif kind == "trans":
            if i.kind in ("valu","mfma","vmem","ds") and (i.r & rs) and not (i.base in TRANS): req = max(req, 1)
        elif kind == "valu_s":
            if i.kind == "valu" and (S(i.r) & rs):
                req = max(req, 2)
                if i.base in ("v_readlane_b32","v_writelane_b32"): req = max(req, 4)
            if i.kind == "vmem" and (S(i.r) & rs): req = max(req, 5)
            if regs("exec") & rs:
                if i.kind == "mfma": req = max(req, 4)
                if i.kind == "valu" and i.dpp: req = max(req, 5)
                if i.kind == "valu" and (getattr(i,"perm",False) or i.base in ("v_readlane_b32","v_readfirstlane_b32","v_writelane_b32")): req = max(req, 4)
        elif kind == "store":
            if (i.w & rs): req = max(req, 2 if i.kind in ("valu","mfma") else 1)
        elif kind == "mfma_d":
            if i.kind == "mfma":
                if (i.A | i.B) & rs: req = max(req, 8)
                if i.C & rs and i.C != rs: req = max(req, 6)
                if (i.D & rs) and not (i.C == rs and i.D == rs): req = max(req, 8)
            elif i.kind in ("valu","vmem","ds"):
                if (i.r | i.w) & rs: req = max(req, 8)
        elif kind == "mfma_c":
            if i.kind == "valu" and (i.w & rs): req = max(req, 3)
        elif kind == "m0":
            if getattr(i, "ldsdma", False): req = max(req, 1)
        elif kind == "sdwa":
            if i.kind == "valu" and ((i.r | i.w) & rs): req = max(req, 1)
        n = max(n, req - age)
    return n

def produce(i):
    out = []
    if i.kind == "valu":
        if V(i.w): out.append(("valu_v", frozenset(V(i.w)), 0, None))
        if S(i.w): out.append(("valu_s", frozenset(S(i.w)), 0, None))
        if i.base in TRANS: out.append(("trans", frozenset(V(i.w)), 0, None))
        if "dst_sel" in i.mods or ("op_sel" in i.mods and not i.base.startswith("v_pk_")): out.append(("sdwa", frozenset(V(i.w)), 0, None))
    elif i.kind == "mfma":
        out.append(("mfma_d", frozenset(i.D), 0, None))
        if V(i.C): out.append(("mfma_c", frozenset(i.C), 0, None))
    elif i.kind == "vmem" and getattr(i, "wide", False):
        out.append(("store", frozenset(i.data), 0, None))
    elif i.kind == "salu" and (("s",124) in i.w):
        out.append(("m0", frozenset(), 0, None))
    return out

def aged(state, k):
    return [(a,b,c+k,d) for (a,b,c,d) in state if c + k < 12]

def merge(a, b):
    d = {}
    for (k, rs, age, e) in list(a) + list(b):
        key = (k, rs)
        d[key] = min(d.get(key, 99), age)
    return [(k, rs, age, None) for (k, rs), age in d.items()]

def pad(text, verbose=False):
    lines = text.split("\n")
    entry = {}
    for it in range(6):
        out = []; state = []; new_entry = {}; nn = 0
        for l in lines:
            s = l.split(";")[0].strip()
            if not s or s.startswith("."):
                out.append(l); continue
            if s.endswith(":"):
                lab = s[:-1]
                state = merge(state, merge(entry.get(lab, []), new_entry.get(lab, [])))
                out.append(l); continue
            i = parse(s)
            n = need(state, i)
            if n > 0:
                out.append("    s_nop %d" % (n-1)); state = aged(state, n); nn += n
            out.append(l)
            k = 1
            if i.base == "s_nop": k = int(i.ops[0], 0) + 1
            state = aged(state, k) + produce(i)
            if i.base.startswith(("s_cbranch","s_branch")):
                lab = i.ops[0]
                new_entry[lab] = merge(new_entry.get(lab, []), state)
            if i.base in ("s_branch","s_endpgm"): state = []
        same = all(sorted(map(str, new_entry.get(k, []))) == sorted(map(str, entry.get(k, []))) for k in set(new_entry) | set(entry))
        entry = {k: merge(entry.get(k, []), v) for k, v in new_entry.items()}
        if same: break
    if verbose: print("hazard pad: inserted", nn, "wait states")
    return "\n".join(out)
```

```python
import sys
from gl import *
from hz import pad

EPOCH = 0
QP = 0x1000
ML = 0x11000
ST = 0x15000
GP = 0x18000
HP = 0x34000
FP = 0x44000
OP = 0x80000
STAMPS = 0x200000
L_Q = 0
L_FLAG = 1024
L_ML = 1088
L_DUMMY = 1280
L_OW = 2304
L_RED = L_OW + 8192
LDS_BYTES = L_RED + 4096
SPIN_LIMIT = 200000
LOG2E = 0x3fb8aa3b
SCALE = 0x3db504f3
EPS = 0x3727c5ac

sK, sV, sWQ, sWO, sW1, sW3, sW2, sWS, sX, sOUT = 8, 12, 16, 20, 24, 28, 32, 36, 40, 44
sG, sS, sW = 48, 49, 50
sTAG, sEP = 51, 52
sT0, sT1, sT2, sT3 = 53, 54, 55, 56
sCNT = 57
sFF = 58
sHI = 59
sROLE = 60
sCOL = 61
sA, sB, sC, sD = 62, 63, 64, 65
sKC, sCB = 66, 67
sXCC = 68
sSTAMP0 = 70


def gen(stamps=False, lpath=True, prefetch_code=True):
    a = Asm()
    nst = {}

    def stamp(k):
        if stamps:
            a(f"s_memrealtime s[{sSTAMP0+2*k}:{sSTAMP0+2*k+1}]")

    def flush_stamps(n):
        if not stamps:
            return
        a(f"""s_waitcnt lgkmcnt(0)
        s_mov_b64 exec, 1
        s_lshl_b32 s{sA}, s2, 3
        s_add_u32 s{sA}, s{sA}, s3
        s_lshl_b32 s{sA}, s{sA}, 6
        s_add_u32 s{sA}, s{sA}, {STAMPS}
        v_mov_b32 v1, 0""")
        for k in range(0, 16, 4):
            for j in range(4):
                if k + j < 15:
                    a(f"v_mov_b32 v{4+j}, s{sSTAMP0+2*(k+j)}")
                else:
                    a(f"v_mov_b32 v{4+j}, s{sCNT}")
            a(f"buffer_store_dwordx4 v[4:7], v1, s[{sWS}:{sWS+3}], s{sA} offen offset:{k*4}")
        a("s_waitcnt vmcnt(0)")

    def epoch_to_tag():
        a(f"""s_and_b32 s{sT0}, s{sEP}, 0xff
        s_add_u32 s{sTAG}, s{sT0}, 1
        s_and_b32 s{sTAG}, s{sTAG}, 0xff""")
        for i in (1, 2, 3):
            a(f"""s_bfe_u32 s{sT1}, s{sEP}, {hex(0x80000 | (8*i))}
            s_add_u32 s{sT1}, s{sT1}, 1
            s_and_b32 s{sT1}, s{sT1}, 0xff
            s_cmp_eq_u32 s{sT1}, s{sT0}
            s_addc_u32 s{sT1}, s{sT1}, 0
            s_and_b32 s{sT1}, s{sT1}, 0xff
            s_lshl_b32 s{sT1}, s{sT1}, {8*i}
            s_or_b32 s{sTAG}, s{sTAG}, s{sT1}""")

    def round_bf16(dst, src):
        a(f"v_cvt_pk_bf16_f32 v{dst}, {src}, {src}")
        a(f"v_and_b32 v{dst}, s{sHI}, v{dst}")

    def wave_sum_to_sgpr(v, sdst, op="add", steps=(8, 4, 2, 1)):
        for k in steps:
            a(f"v_{op}_f32_dpp v{v}, v{v}, v{v} row_ror:{k} row_mask:0xf bank_mask:0xf")
        a(f"v_{op}_f32_dpp v{v}, v{v}, v{v} row_bcast:15 row_mask:0xa bank_mask:0xf")
        a(f"v_{op}_f32_dpp v{v}, v{v}, v{v} row_bcast:31 row_mask:0xc bank_mask:0xf")
        a(f"v_readlane_b32 s{sdst}, v{v}, 63")

    def poll_tail(lab, go):
        a(f"""s_cbranch_vccz {go}
        s_add_u32 s{sCNT}, s{sCNT}, 1
        s_cmp_lt_u32 s{sCNT}, {SPIN_LIMIT}
        s_cbranch_scc1 {lab}
        {go}:""")

    def xreduce4(r0, tmp=None):
        a(f"""v_permlane32_swap_b32 v{r0}, v{r0+1}
        v_permlane32_swap_b32 v{r0+2}, v{r0+3}
        v_add_f32 v{r0}, v{r0}, v{r0+1}
        v_add_f32 v{r0+2}, v{r0+2}, v{r0+3}
        v_permlane16_swap_b32 v{r0}, v{r0+2}
        v_add_f32 v{r0}, v{r0}, v{r0+2}""")

    def pub_store(data, voff, soff, off=0):
        o = f" offset:{off}" if off else ""
        if lpath:
            l1 = a.label("L_ps"); l2 = a.label("L_pe")
            a(f"""s_cmp_eq_u32 s{sCOL}, 1
            s_cbranch_scc1 {l1}
            buffer_store_dwordx4 v[{data}:{data+3}], v{voff}, s[{sWS}:{sWS+3}], s{soff} offen{o} sc1
            s_branch {l2}
            {l1}:
            buffer_store_dwordx4 v[{data}:{data+3}], v{voff}, s[{sWS}:{sWS+3}], s{soff} offen{o}
            {l2}:""")
        else:
            a(f"buffer_store_dwordx4 v[{data}:{data+3}], v{voff}, s[{sWS}:{sWS+3}], s{soff} offen{o} sc1")

    stamp(0)
    a(f"""s_cmp_ge_u32 s2, 256
    s_cbranch_scc1 L_end
    s_load_dwordx2 s[{sK}:{sK+1}], s[0:1], 8
    s_load_dwordx2 s[{sV}:{sV+1}], s[0:1], 16
    s_load_dwordx2 s[{sWQ}:{sWQ+1}], s[0:1], 24
    s_load_dwordx2 s[{sX}:{sX+1}], s[0:1], 0
    s_load_dwordx2 s[{sWS}:{sWS+1}], s[0:1], 88
    s_load_dwordx2 s[{sWO}:{sWO+1}], s[0:1], 32
    s_load_dwordx2 s[{sW1}:{sW1+1}], s[0:1], 48
    s_load_dwordx2 s[{sW3}:{sW3+1}], s[0:1], 56
    s_load_dwordx2 s[{sW2}:{sW2+1}], s[0:1], 64
    s_load_dwordx2 s[{sOUT}:{sOUT+1}], s[0:1], 72
    v_readfirstlane_b32 s3, v0
    v_and_b32 v0, 63, v0
    s_and_b32 s{sG}, s2, 7
    s_lshr_b32 s{sS}, s2, 3
    s_lshr_b32 s3, s3, 6
    v_and_b32 v2, 15, v0
    v_lshrrev_b32 v3, 4, v0""")
    for r, n in ((sK, 67108864), (sV, 67108864), (sWQ, 4194304), (sX, 1024), (sWS, 268435456), (sWO, 4194304),
                 (sW1, 1835008), (sW3, 1835008), (sW2, 1835008), (sOUT, 1024)):
        a(f"s_mov_b32 s{r+2}, {n}")
        a(f"s_mov_b32 s{r+3}, 0x20000")
    a(f"""s_mov_b32 s{sFF}, 0xff
    s_mov_b32 s{sHI}, 0xffff0000
    s_mov_b32 s{sCNT}, 0
    s_cmp_lg_u32 s3, 0
    s_cbranch_scc1 L_kwave""")

    vXS, vXL, vWo = 4, 5, 6
    vM = 8
    vT3 = 12
    X = 16
    XS = 20
    U = 28
    vA = 36
    D = 44
    PP = 48
    WQ = 64
    a(f"""s_setprio 3
    s_and_b32 s{sKC}, s{sS}, 3
    s_lshr_b32 s{sCB}, s{sS}, 2
    v_lshlrev_b32 v{vXS}, 4, v0
    v_lshrrev_b32 v7, 3, v2
    v_lshlrev_b32 v{vXL}, 1, v3
    v_add_u32 v{vXL}, v{vXL}, v7          ; 2*g4 + (r>>3)
    v_lshlrev_b32 v{vWo}, 17, v{vXL}      ; *16 rows *8192
    v_and_b32 v7, 7, v2
    v_lshl_add_u32 v{vWo}, v7, 4, v{vWo}
    v_lshlrev_b32 v{vXL}, 5, v{vXL}       ; *16*2 bytes
    s_lshl_b32 s{sA}, s{sKC}, 8
    s_lshl_b32 s{sB}, s{sKC}, 20
    s_lshl_b32 s{sC}, s{sG}, 10
    s_add_u32 s{sB}, s{sB}, s{sC}
    s_lshl_b32 s{sC}, s{sCB}, 7
    s_add_u32 s{sB}, s{sB}, s{sC}
    s_waitcnt lgkmcnt(0)
    buffer_load_dwordx4 v[{X}:{X+3}], v{vXS}, s[{sX}:{sX+3}], 0 offen
    buffer_load_dwordx4 v[{XS}:{XS+3}], v{vXL}, s[{sX}:{sX+3}], s{sA} offen
    buffer_load_dwordx4 v[{XS+4}:{XS+7}], v{vXL}, s[{sX}:{sX+3}], s{sA} offen offset:16""")
    for t in range(16):
        a(f"buffer_load_dwordx4 v[{WQ+4*t}:{WQ+4*t+3}], v{vWo}, s[{sWQ}:{sWQ+3}], s{sB} offen nt")
        if t < 15:
            a(f"s_add_u32 s{sB}, s{sB}, 8192")
    a(f"s_load_dword s{sEP}, s[{sWS}:{sWS+1}], {EPOCH}")
    stamp(1)

    def build_masks(vM):
        a(f"""v_and_b32 v7, 1, v2
        v_lshlrev_b32 v7, 4, v7
        v_mov_b32 v13, 0xffff
        v_lshlrev_b32 v13, v7, v13
        v_bfe_u32 v7, v2, 1, 2""")
        for i in range(4):
            a(f"v_cmp_eq_u32 vcc, {i}, v7")
            a(f"v_cndmask_b32 v{vM+i}, 0, v13, vcc")

    build_masks(vM)
    a(f"s_getreg_b32 s{sXCC}, hwreg(HW_REG_XCC_ID)")
    a(f"s_and_b32 s{sXCC}, s{sXCC}, 0xff")
    a(f"s_waitcnt vmcnt(18)")
    stamp(2)
    for i in range(4):
        a(f"v_lshlrev_b32 v{U+2*i}, 16, v{X+i}")
        a(f"v_and_b32 v{U+2*i+1}, s{sHI}, v{X+i}")
    a(f"""v_pk_add_f32 v[{vA}:{vA+1}], v[{U}:{U+1}], v[{U+2}:{U+3}]
    v_pk_add_f32 v[{vA+2}:{vA+3}], v[{U+4}:{U+5}], v[{U+6}:{U+7}]
    v_pk_add_f32 v[{vA}:{vA+1}], v[{vA}:{vA+1}], v[{vA+2}:{vA+3}]
    v_add_f32 v{vA}, v{vA}, v{vA+1}""")
    wave_sum_to_sgpr(vA, sA)
    a(f"""v_mov_b32 v14, 0x3b000000
    v_mul_f32 v14, s{sA}, v14            ; mean""")
    for i in range(4):
        a(f"v_pk_add_f32 v[{U+2*i}:{U+2*i+1}], v[{U+2*i}:{U+2*i+1}], v[14:15] op_sel_hi:[1,0] neg_lo:[0,1] neg_hi:[0,1]")
    a(f"v_pk_mul_f32 v[{vA}:{vA+1}], v[{U}:{U+1}], v[{U}:{U+1}]")
    for i in range(1, 4):
        a(f"v_pk_fma_f32 v[{vA}:{vA+1}], v[{U+2*i}:{U+2*i+1}], v[{U+2*i}:{U+2*i+1}], v[{vA}:{vA+1}]")
    a(f"v_add_f32 v{vA}, v{vA}, v{vA+1}")
    wave_sum_to_sgpr(vA, sA)
    round_bf16(14, "v14")
    a(f"""v_mov_b32 v40, 0x3b000000
    v_mul_f32 v40, s{sA}, v40""")
    round_bf16(40, "v40")
    a(f"v_add_f32 v40, {hex(EPS)}, v40")
    round_bf16(40, "v40")
    a(f"v_sqrt_f32 v40, v40")
    round_bf16(40, "v40")
    a(f"v_rcp_f32 v40, v40")
    a(f"s_waitcnt vmcnt(16)")
    for j in range(8):
        u = U + 2 * (j % 4)
        a(f"""v_lshlrev_b32 v{u}, 16, v{XS+j}
        v_and_b32 v{u+1}, s{sHI}, v{XS+j}
        v_pk_add_f32 v[{u}:{u+1}], v[{u}:{u+1}], v[14:15] op_sel_hi:[1,0] neg_lo:[0,1] neg_hi:[0,1]
        v_cvt_pk_bf16_f32 v{u+1}, v{u}, v{u+1}
        v_lshlrev_b32 v{u}, 16, v{u+1}
        v_and_b32 v{u+1}, s{sHI}, v{u+1}
        v_pk_mul_f32 v[{u}:{u+1}], v[{u}:{u+1}], v[40:41] op_sel_hi:[1,0]
        v_cvt_pk_bf16_f32 v{PP+2*j}, v{u}, v{u}
        v_cvt_pk_bf16_f32 v{PP+2*j+1}, v{u+1}, v{u+1}""")
    a(f"s_waitcnt lgkmcnt(0)")
    epoch_to_tag()
    a(f"""v_lshlrev_b32 v7, 3, v0
    v_add_u32 v7, 24, v7
    v_alignbit_b32 v{vT3}, s{sTAG}, s{sTAG}, v7""")
    stamp(3)

    def selA(t):
        s = vA + 4 * (t & 1)
        for i in range(4):
            a(f"v_and_b32 v{s+i}, v{PP+t}, v{vM+i}")
    selA(0)
    for t in range(16):
        if t < 15:
            selA(t + 1)
        a(f"s_waitcnt vmcnt({15-t})")
        s = vA + 4 * (t & 1)
        c = "0" if t == 0 else f"v[{D}:{D+3}]"
        a(f"v_mfma_f32_16x16x32_bf16 v[{D}:{D+3}], v[{s}:{s+3}], v[{WQ+4*t}:{WQ+4*t+3}], {c}")
    a(f"""v_and_b32 v7, 7, v0
    v_lshl_add_u32 v7, v3, 3, v7
    v_lshlrev_b32 v7, 4, v7               ; (8q + c)*16
    s_lshl_b32 s{sA}, s{sG}, 13
    s_add_u32 s{sA}, s{sA}, {QP}
    s_lshl_b32 s{sB}, s{sKC}, 11
    s_add_u32 s{sB}, s{sB}, s{sA}
    s_lshl_b32 s{sC}, s{sCB}, 8
    s_add_u32 s{sB}, s{sB}, s{sC}
    s_add_u32 s{sC}, s{sA}, 4096
    v_mov_b32 v13, s{sXCC}""")
    for i in range(4):
        a(f"v_mov_b32 v{U+i}, v{D+i}")
    for i in range(4):
        a(f"v_permlane32_swap_b32 v{D+i}, v{U+i}")
    for i in range(4):
        a(f"v_add_f32_dpp v{D+i}, v{U+i}, v{D+i} row_ror:8 row_mask:0xf bank_mask:0xf")
    a(f"""v_bfi_b32 v{D+2}, s{sFF}, v13, v{D+2}
    v_bfi_b32 v{D+3}, s{sFF}, v{vT3}, v{D+3}
    s_mov_b64 exec, 0x00ff00ff
    buffer_store_dwordx4 v[{D}:{D+3}], v7, s[{sWS}:{sWS+3}], s{sB} offen sc1
    s_mov_b64 exec, -1""")
    stamp(4)
    a(f"""v_and_b32 v7, 7, v0
    v_lshl_add_u32 v7, v3, 3, v7
    v_lshlrev_b32 v7, 4, v7
    v_and_b32 v14, 8, v0
    v_add_u32 v7, v7, v14                 ; + (gamma>>3)*8""")
    G = WQ
    a("L_qpoll:")
    for kc in range(4):
        for h in range(2):
            o = kc * 2048 + h * 1024
            so = sA if o < 4096 else sC
            r = G + 4 * (kc * 2 + h)
            a(f"buffer_load_dwordx4 v[{r}:{r+3}], v{vXS}, s[{sWS}:{sWS+3}], s{so} offen offset:{o % 4096} sc1")
    a("s_waitcnt vmcnt(0)")
    a(f"v_xor_b32 v14, v{G+3}, v{vT3}")
    for k in range(1, 8):
        a(f"v_bitop3_b32 v14, v14, v{G+4*k+3}, v{vT3} bitop3:0xf6")
    a(f"""v_and_b32 v14, s{sFF}, v14
    v_cmp_ne_u32 vcc, 0, v14""")
    poll_tail("L_qpoll", "L_qgo")
    stamp(5)
    for h in range(2):
        r = G + 4 * h
        for kc in range(1, 4):
            q = G + 4 * (kc * 2 + h)
            if kc == 1 and h == 0:
                a(f"v_xor_b32 v15, v{r+2}, v13")
            elif kc == 1:
                a(f"v_bitop3_b32 v15, v15, v{r+2}, v13 bitop3:0xf6")
            a(f"v_bitop3_b32 v15, v15, v{q+2}, v13 bitop3:0xf6")
            a(f"v_pk_add_f32 v[{r}:{r+1}], v[{r}:{r+1}], v[{q}:{q+1}]")
            a(f"v_pk_add_f32 v[{r+2}:{r+3}], v[{r+2}:{r+3}], v[{q+2}:{q+3}]")
        a(f"v_cvt_pk_bf16_f32 v{r}, v{r}, v{r+1}")
        a(f"v_cvt_pk_bf16_f32 v{r+1}, v{r+2}, v{r+3}")
        a(f"ds_write_b64 v7, v[{r}:{r+1}] offset:{L_Q + 512*h}")
    a(f"""v_and_b32 v15, s{sFF}, v15
    v_cmp_ne_u32 vcc, 0, v15
    s_cmp_eq_u64 vcc, 0
    s_cselect_b32 s{sA}, 1, 0
    v_mov_b32 v14, s{sA}
    v_mov_b32 v15, {L_FLAG}
    ds_write_b32 v15, v14
    s_waitcnt lgkmcnt(0)
    s_barrier""")
    stamp(6)
    flush_stamps(7)
    a("s_endpgm")

    vKo, vVo = 4, 5
    KD, VD, WD = 32, 64, 96
    a(f"""L_kwave:
    s_sub_u32 s{sW}, s3, 1
    v_and_b32 v6, 7, v2
    v_lshlrev_b32 v{vKo}, 8, v6
    v_lshrrev_b32 v6, 3, v2
    v_lshl_add_u32 v{vKo}, v6, 6, v{vKo}
    v_lshl_add_u32 v{vKo}, v3, 4, v{vKo}
    v_lshlrev_b32 v{vVo}, 10, v3
    v_lshl_add_u32 v{vVo}, v2, 4, v{vVo}
    s_lshl_b32 s{sA}, s{sG}, 23
    s_lshl_b32 s{sB}, s{sS}, 15
    s_add_u32 s{sA}, s{sA}, s{sB}
    s_lshl_b32 s{sB}, s{sW}, 13
    s_add_u32 s{sA}, s{sA}, s{sB}
    s_add_u32 s{sA}, s{sA}, {28672*256}
    s_add_u32 s{sB}, s{sA}, 4096
    s_waitcnt lgkmcnt(0)""")
    if prefetch_code:
        a(f"""s_lshl_b32 s{sC}, s{sS}, 2
        s_add_u32 s{sC}, s{sC}, s{sW}
        s_cmp_lg_u32 s{sC}, 127
        s_cbranch_scc1 L_nopre
        s_getpc_b64 s[{sC}:{sD}]
        L_pc:
        v_lshlrev_b32 v7, 7, v0
        v_min_u32 v7, L_end-L_pc, v7
        global_load_dword v143, v7, s[{sC}:{sD}]
        L_nopre:""")
    for tau in range(2):
        for eta in range(2):
            for lam in range(2):
                r = KD + ((tau * 2 + eta) * 2 + lam) * 4
                a(f"buffer_load_dwordx4 v[{r}:{r+3}], v{vKo}, s[{sK}:{sK+3}], s{sA+tau} offen offset:{eta*2048+lam*128} nt")
    a(f"s_load_dword s{sEP}, s[{sWS}:{sWS+1}], {EPOCH}")
    for tau in range(2):
        for i in range(4):
            r = VD + (tau * 4 + i) * 4
            a(f"buffer_load_dwordx4 v[{r}:{r+3}], v{vVo}, s[{sV}:{sV+3}], s{sA+tau} offen offset:{i*256} nt")
    stamp(1)
    vM = 8
    vPM = 12
    vT = 24
    vWo = 14
    vI = 15
    build_masks(vM)
    a(f"""v_or_b32 v{vPM}, v{vM}, v{vM+2}
    v_or_b32 v{vPM+1}, v{vM+1}, v{vM+3}
    v_cmp_gt_u32 vcc, 8, v2""")
    for i in range(4):
        a(f"v_cndmask_b32 v{vM+i}, 0, v{vM+i}, vcc")
    a(f"""v_and_b32 v{vI}, 1, v3
    v_lshlrev_b32 v{vI}, 1, v{vI}
    v_lshrrev_b32 v6, 1, v3
    v_add_u32 v{vI}, v{vI}, v6
    s_and_b32 s{sKC}, s{sS}, 3
    s_lshr_b32 s{sC}, s{sS}, 2
    s_sub_u32 s{sCB}, s{sC}, 4
    s_lshl_b32 s{sCB}, s{sCB}, 3
    s_add_u32 s{sCB}, s{sCB}, s{sG}
    s_cmp_lt_u32 s{sS}, 16
    s_cselect_b32 s{sROLE}, 0, 1
    s_cselect_b32 s{sCB}, 0, s{sCB}
    s_cmp_ge_u32 s{sCB}, 28
    s_cselect_b32 s{sROLE}, 2, s{sROLE}
    s_waitcnt lgkmcnt(0)""")
    epoch_to_tag()
    a(f"v_lshlrev_b32 v6, 3, v0")
    for j in range(4):
        a(f"v_alignbit_b32 v{vT+j}, s{sTAG}, s{sTAG}, v6")
        if j < 3:
            a(f"v_add_u32 v6, 8, v6")
    vQa, vOa, vMa = 16, 17, 18
    a(f"""v_lshrrev_b32 v6, 2, v2
    v_lshlrev_b32 v{vQa}, 8, v6           ; head*256
    v_and_b32 v7, 2, v2
    v_lshl_add_u32 v{vQa}, v7, 5, v{vQa}  ; set*64
    v_lshl_add_u32 v{vQa}, v3, 4, v{vQa}  ; g4*16
    v_lshlrev_b32 v{vOa}, 9, v3
    v_lshl_add_u32 v{vOa}, v2, 5, v{vOa}
    s_lshl_b32 s{sC}, s{sW}, 11
    s_add_u32 s{sC}, s{sC}, {L_OW}
    v_add_u32 v{vOa}, s{sC}, v{vOa}
    s_lshl_b32 s{sC}, s{sW}, 3
    s_add_u32 s{sC}, s{sC}, {L_ML}
    v_lshl_add_u32 v{vMa}, v6, 5, s{sC}
    v_lshlrev_b32 v6, 4, v0
    v_add_u32 v6, {L_DUMMY}, v6
    v_and_b32 v7, 0x33, v0
    v_cmp_eq_u32 vcc, 0, v7
    v_cndmask_b32 v{vMa}, v6, v{vMa}, vcc
    v_lshlrev_b32 v{vWo}, 10, v{vI}
    v_lshl_add_u32 v{vWo}, v2, 4, v{vWo}  ; i(g4)*1024 + c*16""")
    a("s_setprio 2")
    stamp(2)
    a("s_barrier")
    stamp(3)
    B0 = 144
    SD = 152
    a(f"""v_mov_b32 v6, {L_FLAG}
    ds_read_b128 v[{B0}:{B0+3}], v{vQa} offset:{L_Q}
    ds_read_b128 v[{B0+4}:{B0+7}], v{vQa} offset:{L_Q+128}
    ds_read_b32 v6, v6
    s_waitcnt vmcnt(8)
    s_cmp_lg_u32 s{sROLE}, 0
    s_cbranch_scc1 L_nowo""")
    a(f"""s_lshr_b32 s{sC}, s{sS}, 2
    s_lshl2_add_u32 s{sC}, s{sG}, s{sC}   ; H
    s_lshl_b32 s{sC}, s{sC}, 17
    s_lshl_b32 s{sD}, s{sW}, 15
    s_add_u32 s{sC}, s{sC}, s{sD}
    s_lshl_b32 s{sD}, s{sKC}, 8
    s_add_u32 s{sC}, s{sC}, s{sD}""")
    for t in range(8):
        a(f"buffer_load_dwordx4 v[{WD+4*t}:{WD+4*t+3}], v{vWo}, s[{sWO}:{sWO+3}], s{sC} offen nt")
        if t < 7:
            a(f"s_add_u32 s{sC}, s{sC}, 4096")
    a("L_nowo:")
    a("s_waitcnt lgkmcnt(0)")
    a(f"v_readfirstlane_b32 s{sCOL}, v6")
    for lam in range(2):
        for te in range(4):
            r = KD + (te * 2 + lam) * 4
            d = SD + te * 4
            c = "0" if lam == 0 else f"v[{d}:{d+3}]"
            a(f"v_mfma_f32_16x16x32_bf16 v[{d}:{d+3}], v[{r}:{r+3}], v[{B0+4*lam}:{B0+4*lam+3}], {c}")
    for tau in range(2):
        for i in range(4):
            a(f"v_permlane32_swap_b32 v{SD+8*tau+i}, v{SD+8*tau+4+i}")
    Sx = [SD + 8 * tau + i for tau in range(2) for i in range(4)]
    for tau in range(2):
        for i in range(4):
            s = SD + 8 * tau + i
            a(f"v_add_f32_dpp v{s}, v{s+4}, v{s} quad_perm:[2,3,2,3] row_mask:0xf bank_mask:0xf")
    a(f"v_mov_b32 v20, {hex(SCALE)}")
    for k in range(0, 8, 2):
        s = Sx[k]
        a(f"""v_cvt_pk_bf16_f32 v{s+1}, v{s}, v{s+1}
        v_lshlrev_b32 v{s}, 16, v{s+1}
        v_and_b32 v{s+1}, s{sHI}, v{s+1}
        v_pk_mul_f32 v[{s}:{s+1}], v[{s}:{s+1}], v[20:21] op_sel_hi:[1,0]
        v_cvt_pk_bf16_f32 v{s+1}, v{s}, v{s+1}
        v_lshlrev_b32 v{s}, 16, v{s+1}
        v_and_b32 v{s+1}, s{sHI}, v{s+1}""")
    vMx, vL = 28, 29
    a(f"""v_max3_f32 v{vMx}, v{Sx[0]}, v{Sx[1]}, v{Sx[2]}
    v_max3_f32 v20, v{Sx[3]}, v{Sx[4]}, v{Sx[5]}
    v_max3_f32 v{vMx}, v{Sx[6]}, v{Sx[7]}, v{vMx}
    v_max_f32 v{vMx}, v{vMx}, v20
    v_mov_b32 v20, v{vMx}
    v_permlane32_swap_b32 v{vMx}, v20
    v_max_f32 v{vMx}, v{vMx}, v20
    v_mov_b32 v20, v{vMx}
    v_permlane16_swap_b32 v{vMx}, v20
    v_max_f32 v{vMx}, v{vMx}, v20
    s_mov_b32 s{sD}, {hex(LOG2E)}
    v_mul_f32 v20, s{sD}, v{vMx}""")
    for k in range(8):
        a(f"v_fma_f32 v{Sx[k]}, v{Sx[k]}, s{sD}, -v20")
    for k in range(8):
        a(f"v_exp_f32 v{Sx[k]}, v{Sx[k]}")
    XR = [SD + 4, SD + 6, SD + 12, SD + 14, B0, B0 + 2, B0 + 4, B0 + 6]
    for k in range(8):
        a(f"v_cvt_pk_bf16_f32 v{XR[k]+1}, v{Sx[k]}, v{Sx[k]}")
    for k in range(8):
        a(f"v_and_b32_dpp v{XR[k]}, v{XR[k]+1}, v{vPM} quad_perm:[0,0,0,0] row_mask:0xf bank_mask:0xf")
    for k in range(8):
        a(f"v_and_b32_dpp v{XR[k]+1}, v{XR[k]+1}, v{vPM+1} quad_perm:[0,0,0,0] row_mask:0xf bank_mask:0xf")
    stamp(4)
    OA = KD
    for tau in range(2):
        l1 = a.label("L_vw"); l2 = a.label("L_vx")
        a(f"""s_cmp_lg_u32 s{sROLE}, 0
        s_cbranch_scc1 {l1}
        s_waitcnt vmcnt({8 + 4*(1-tau)})
        s_branch {l2}
        {l1}:
        s_waitcnt vmcnt({4*(1-tau)})
        {l2}:""")
        for i in range(4):
            k = tau * 4 + i
            r = VD + k * 4
            for u in range(2):
                d = OA + 4 * u
                c = "0" if k == 0 else f"v[{d}:{d+3}]"
                a(f"v_mfma_f32_16x16x16_bf16 v[{d}:{d+3}], v[{XR[k]}:{XR[k]+1}], v[{r+2*u}:{r+2*u+1}], {c}")
            if tau == 0 and i == 0:
                a(f"""v_add_f32 v{vL}, v{Sx[0]}, v{Sx[1]}
                v_add_f32 v20, v{Sx[2]}, v{Sx[3]}""")
            if tau == 0 and i == 1:
                a(f"""v_add_f32 v21, v{Sx[4]}, v{Sx[5]}
                v_add_f32 v22, v{Sx[6]}, v{Sx[7]}""")
            if tau == 0 and i == 2:
                a(f"""v_add_f32 v{vL}, v{vL}, v20
                v_add_f32 v21, v21, v22""")
            if tau == 0 and i == 3:
                a(f"""v_add_f32 v{vL}, v{vL}, v21
                v_mov_b32 v20, v{vL}""")
            if tau == 1 and i == 0:
                a(f"""v_permlane32_swap_b32 v{vL}, v20
                v_add_f32 v{vL}, v{vL}, v20""")
            if tau == 1 and i == 1:
                a(f"""v_mov_b32 v20, v{vL}""")
            if tau == 1 and i == 2:
                a(f"""v_permlane16_swap_b32 v{vL}, v20
                v_add_f32 v{vL}, v{vL}, v20""")
    stamp(5)
    a(f"""ds_write_b64 v{vMa}, v[{vMx}:{vMx+1}]
    s_lshl_b32 s{sC}, s{sW}, 5
    s_add_u32 s{sC}, s{sC}, {L_ML}
    v_mov_b32 v20, s{sC}
    s_lshl_b32 s{sC}, s{sW}, 9
    s_add_u32 s{sC}, s{sC}, {L_OW}
    v_lshl_add_u32 v21, v0, 4, s{sC}
    v_lshlrev_b32 v19, 4, v0
    s_lshl2_add_u32 s{sC}, s{sG}, s{sW}
    s_lshl_b32 s{sC}, s{sC}, 5
    s_add_u32 s{sC}, s{sC}, s{sS}
    s_lshl_b32 s{sA}, s{sC}, 9
    s_add_u32 s{sA}, s{sA}, {OP}
    s_lshl_b32 s{sB}, s{sC}, 4
    s_add_u32 s{sB}, s{sB}, {ML}
    ds_write_b128 v{vOa}, v[{OA}:{OA+3}]
    ds_write_b128 v{vOa}, v[{OA+4}:{OA+7}] offset:16
    s_waitcnt lgkmcnt(0)
    s_barrier
    s_mov_b32 exec_hi, 0""")
    C0 = 40
    a(f"""ds_read_b128 v[{C0}:{C0+3}], v20
    ds_read_b128 v[{C0+4}:{C0+7}], v20 offset:16""")
    for w in range(4):
        a(f"ds_read_b128 v[{48+4*w}:{48+4*w+3}], v21 offset:{2048*w}")
    MLG = 28
    a(f"""v_mov_b32 v{MLG+2}, s{sTAG}
    v_mov_b32 v{MLG+3}, s{sTAG}
    s_waitcnt lgkmcnt(4)
    v_max3_f32 v{MLG}, v{C0}, v{C0+2}, v{C0+4}
    v_max_f32 v{MLG}, v{MLG}, v{C0+6}""")
    for w in range(4):
        a(f"v_sub_f32 v{C0+2*w}, v{C0+2*w}, v{MLG}")
    for w in range(4):
        a(f"v_mul_f32 v{C0+2*w}, s{sD}, v{C0+2*w}")
    for w in range(4):
        a(f"v_exp_f32 v{C0+2*w}, v{C0+2*w}")
    a(f"s_waitcnt lgkmcnt(0)")
    a(f"v_pk_mul_f32 v[48:49], v[48:49], v[{C0}:{C0+1}] op_sel_hi:[1,0]")
    a(f"v_pk_mul_f32 v[50:51], v[50:51], v[{C0}:{C0+1}] op_sel_hi:[1,0]")
    for w in range(1, 4):
        a(f"v_pk_fma_f32 v[48:49], v[{48+4*w}:{48+4*w+1}], v[{C0+2*w}:{C0+2*w+1}], v[48:49] op_sel_hi:[1,0,1]")
        a(f"v_pk_fma_f32 v[50:51], v[{48+4*w+2}:{48+4*w+3}], v[{C0+2*w}:{C0+2*w+1}], v[50:51] op_sel_hi:[1,0,1]")
    a(f"v_bfi_b32 v51, s{sFF}, v{vT+3}, v51")
    pub_store(48, 19, sA)
    a(f"v_mul_f32 v{MLG+1}, v{C0}, v{C0+1}")
    for w in range(1, 4):
        a(f"v_fmac_f32 v{MLG+1}, v{C0+2*w}, v{C0+2*w+1}")
    a("s_mov_b32 exec_lo, 1")
    pub_store(MLG, 19, sB)
    a("s_mov_b64 exec, -1")
    stamp(6)
    a(f"""s_cmp_eq_u32 s{sROLE}, 1
    s_cbranch_scc1 L_frole
    s_cmp_eq_u32 s{sROLE}, 2
    s_cbranch_scc1 L_kdone""")

    GD = 32
    vGo, vMo = 20, 21
    a(f"""s_lshr_b32 s{sC}, s{sS}, 2
    s_lshl2_add_u32 s{sC}, s{sG}, s{sC}      ; H
    s_lshl_b32 s{sA}, s{sC}, 14
    s_add_u32 s{sA}, s{sA}, {OP}
    s_lshl_b32 s{sB}, s{sW}, 7
    s_add_u32 s{sA}, s{sA}, s{sB}
    s_lshl_b32 s{sB}, s{sC}, 9
    s_add_u32 s{sB}, s{sB}, {ML}
    v_lshrrev_b32 v6, 3, v0                   ; pp
    v_and_b32 v7, 7, v0
    v_lshlrev_b32 v{vGo}, 11, v6
    v_lshl_add_u32 v{vGo}, v7, 4, v{vGo}
    v_and_b32 v7, 3, v0
    v_lshl_add_u32 v{vMo}, v6, 2, v7
    v_lshlrev_b32 v{vMo}, 4, v{vMo}
    L_opoll:
    buffer_load_dwordx4 v[48:51], v{vMo}, s[{sWS}:{sWS+3}], s{sB} offen sc1""")
    for u in range(4):
        a(f"buffer_load_dwordx4 v[{GD+4*u}:{GD+4*u+3}], v{vGo}, s[{sWS}:{sWS+3}], s{sA} offen offset:{512*u} sc1")
    a(f"""s_waitcnt vmcnt(0)
    v_xor_b32 v6, v{GD+3}, v{vT+3}""")
    for u in range(1, 4):
        a(f"v_bitop3_b32 v6, v6, v{GD+4*u+3}, v{vT+3} bitop3:0xf6")
    a(f"""v_and_b32 v6, s{sFF}, v6
    v_bitop3_b32 v6, v6, v51, s{sTAG} bitop3:0xf6
    v_cmp_ne_u32 vcc, 0, v6""")
    poll_tail("L_opoll", "L_ogo")
    stamp(7)
    a(f"""v_max_f32_dpp v6, v48, v48 quad_perm:[1,0,3,2] row_mask:0xf bank_mask:0xf
    v_max_f32_dpp v6, v6, v6 quad_perm:[2,3,0,1] row_mask:0xf bank_mask:0xf""")
    wave_sum_to_sgpr(6, sT0, op="max", steps=(8,))
    a(f"""v_subrev_f32 v48, s{sT0}, v48
    v_mul_f32 v48, s{sD}, v48
    v_exp_f32 v48, v48
    v_mul_f32 v6, v48, v49""")
    for i in range(4):
        a(f"v_mul_f32_dpp v{GD+i}, v48, v{GD+i} quad_perm:[0,0,0,0] row_mask:0xf bank_mask:0xf")
    a(f"v_add_f32_dpp v6, v6, v6 quad_perm:[1,0,3,2] row_mask:0xf bank_mask:0xf")
    for i in range(4):
        a(f"v_fmac_f32_dpp v{GD+i}, v48, v{GD+4+i} quad_perm:[1,1,1,1] row_mask:0xf bank_mask:0xf")
    a(f"v_add_f32_dpp v6, v6, v6 quad_perm:[2,3,0,1] row_mask:0xf bank_mask:0xf")
    for i in range(4):
        a(f"v_fmac_f32_dpp v{GD+i}, v48, v{GD+8+i} quad_perm:[2,2,2,2] row_mask:0xf bank_mask:0xf")
    a(f"v_add_f32_dpp v6, v6, v6 row_ror:8 row_mask:0xf bank_mask:0xf")
    for i in range(4):
        a(f"v_fmac_f32_dpp v{GD+i}, v48, v{GD+12+i} quad_perm:[3,3,3,3] row_mask:0xf bank_mask:0xf")
    a(f"""v_add_f32_dpp v6, v6, v6 row_bcast:15 row_mask:0xa bank_mask:0xf
    v_permlane32_swap_b32 v{GD}, v{GD+1}
    v_permlane32_swap_b32 v{GD+2}, v{GD+3}
    v_add_f32_dpp v6, v6, v6 row_bcast:31 row_mask:0xc bank_mask:0xf
    v_add_f32 v{GD}, v{GD}, v{GD+1}
    v_add_f32 v{GD+2}, v{GD+2}, v{GD+3}
    v_readlane_b32 s{sT0}, v6, 63
    v_permlane16_swap_b32 v{GD}, v{GD+2}
    v_add_f32 v{GD}, v{GD}, v{GD+2}
    v_rcp_f32 v6, s{sT0}
    v_add_f32_dpp v{GD}, v{GD}, v{GD} row_ror:8 row_mask:0xf bank_mask:0xf
    v_mul_f32 v{GD}, v{GD}, v6
    v_cvt_pk_bf16_f32 v{GD}, v{GD}, v{GD}""")
    AS = 40
    DD = 48

    def gemv(src, n, wbase, bank, dreg, bc=lambda t: t):
        def sel(t):
            s = AS + 4 * (t & 1)
            for i in range(4):
                a(f"v_and_b32_dpp v{s+i}, v{src}, v{vM+i} row_newbcast:{bc(t)} row_mask:0xf bank_mask:{bank}")
        sel(0)
        for t in range(n):
            if t < n - 1:
                sel(t + 1)
            s = AS + 4 * (t & 1)
            c = "0" if t == 0 else f"v[{dreg}:{dreg+3}]"
            a(f"v_mfma_f32_16x16x32_bf16 v[{dreg}:{dreg+3}], v[{s}:{s+3}], v[{wbase+4*t}:{wbase+4*t+3}], {c}")
    gemv(GD, 8, WD, "0xf", DD)
    a(f"""s_lshl_b32 s{sC}, s{sW}, 10
    s_add_u32 s{sC}, s{sC}, {L_RED}
    v_lshl_add_u32 v6, v0, 4, s{sC}
    v_and_b32 v7, 1, v0
    v_lshlrev_b32 v7, 4, v7
    v_lshrrev_b32 v20, 1, v0
    v_add_u32 v7, v7, v20
    v_lshlrev_b32 v7, 4, v7               ; (16*(l&1) + (l>>1))*16
    ds_write_b128 v6, v[{DD}:{DD+3}]
    s_waitcnt lgkmcnt(0)
    s_barrier""")
    stamp(8)
    a(f"""s_cmp_eq_u32 s{sW}, 1
    s_cbranch_scc1 L_final
    s_cmp_lg_u32 s{sW}, 0
    s_cbranch_scc1 L_kdone
    s_mov_b32 exec_hi, 0""")
    for w in range(4):
        a(f"ds_read_b128 v[{32+4*w}:{32+4*w+3}], v7 offset:{L_RED+1024*w}")
    a(f"""s_lshr_b32 s{sC}, s{sS}, 2
    s_lshl2_add_u32 s{sC}, s{sG}, s{sC}      ; H
    s_lshl_b32 s{sA}, s{sKC}, 5
    s_add_u32 s{sA}, s{sA}, s{sC}
    s_lshl_b32 s{sA}, s{sA}, 9
    s_add_u32 s{sA}, s{sA}, {HP}
    s_waitcnt lgkmcnt(2)
    v_pk_add_f32 v[32:33], v[32:33], v[36:37]
    v_pk_add_f32 v[34:35], v[34:35], v[38:39]
    s_waitcnt lgkmcnt(0)
    v_pk_add_f32 v[40:41], v[40:41], v[44:45]
    v_pk_add_f32 v[42:43], v[42:43], v[46:47]
    v_pk_add_f32 v[32:33], v[32:33], v[40:41]
    v_pk_add_f32 v[34:35], v[34:35], v[42:43]""")
    for j in range(4):
        a(f"v_bfi_b32 v{32+j}, s{sFF}, v{vT+j}, v{32+j}")
    a(f"buffer_store_dwordx4 v[32:35], v19, s[{sWS}:{sWS+3}], s{sA} offen sc1")
    stamp(9)
    a("s_branch L_kdone")

    a(f"""L_final:
    s_lshl4_add_u32 s{sT0}, s{sG}, s{sS}      ; G
    s_lshr_b32 s{sT1}, s{sT0}, 5              ; quarter
    s_bfe_u32 s{sT2}, s{sT0}, 0x10004
    s_lshl1_add_u32 s{sT2}, s{sS}, s{sT2}     ; n
    s_lshl_b32 s{sA}, s{sT1}, 5
    s_add_u32 s{sA}, s{sA}, s{sT2}            ; column/4
    s_lshl_b32 s{sC}, s{sA}, 3
    v_lshlrev_b32 v20, 1, v{vI}
    buffer_load_short_d16_hi v21, v20, s[{sX}:{sX+3}], s{sC} offen
    s_lshl_b32 s{sA}, s{sT1}, 14
    s_lshl_b32 s{sB}, s{sT2}, 4
    s_add_u32 s{sA}, s{sA}, s{sB}
    s_add_u32 s{sA}, s{sA}, {HP}
    v_and_b32 v6, 31, v0
    v_lshlrev_b32 v6, 9, v6
    s_lshl_b32 s{sT2}, s{sT2}, 3""")
    for j in range(4):
        a(f"s_add_u32 s{sT3}, s{sT2}, {8*j}")
        a(f"v_mov_b32 v7, s{sT3}")
        a(f"v_alignbit_b32 v{40+j}, s{sTAG}, s{sTAG}, v7")
    a(f"""L_hpoll:
    buffer_load_dwordx4 v[32:35], v6, s[{sWS}:{sWS+3}], s{sA} offen sc1
    s_waitcnt vmcnt(0)
    v_xor_b32 v7, v32, v40""")
    for j in range(1, 4):
        a(f"v_bitop3_b32 v7, v7, v{32+j}, v{40+j} bitop3:0xf6")
    a(f"""v_and_b32 v7, s{sFF}, v7
    v_cmp_ne_u32 vcc, 0, v7""")
    poll_tail("L_hpoll", "L_hgo")
    stamp(9)
    xreduce4(32)
    for k in (8, 4, 2, 1):
        a(f"v_add_f32_dpp v32, v32, v32 row_ror:{k} row_mask:0xf bank_mask:0xf")
    a(f"v_mul_f32 v32, 0.5, v32")
    round_bf16(32, "v32")
    a(f"""v_and_b32 v21, s{sHI}, v21
    v_add_f32 v21, v21, v32""")
    round_bf16(21, "v21")
    a(f"""s_lshl_b32 s{sA}, s{sT0}, 4
    s_add_u32 s{sA}, s{sA}, {FP}
    s_add_u32 s{sB}, s{sA}, {64*2048}
    v_lshlrev_b32 v6, 11, v0
    s_lshl_b32 s{sT2}, s{sT0}, 3""")
    for j in range(4):
        a(f"s_add_u32 s{sT3}, s{sT2}, {8*j}")
        a(f"v_mov_b32 v7, s{sT3}")
        a(f"v_alignbit_b32 v{40+j}, s{sTAG}, s{sTAG}, v7")
    for j in range(4):
        a(f"v_mov_b32 v{36+j}, v{40+j}")
        a(f"v_and_b32 v{36+j}, s{sFF}, v{36+j}")
    a(f"""L_fpoll:
    buffer_load_dwordx4 v[32:35], v6, s[{sWS}:{sWS+3}], s{sA} offen sc1
    s_mov_b32 exec_hi, 0xffff
    buffer_load_dwordx4 v[36:39], v6, s[{sWS}:{sWS+3}], s{sB} offen sc1
    s_mov_b32 exec_hi, -1
    s_waitcnt vmcnt(0)
    v_xor_b32 v7, v32, v40""")
    for j in range(1, 4):
        a(f"v_bitop3_b32 v7, v7, v{32+j}, v{40+j} bitop3:0xf6")
    for j in range(4):
        a(f"v_bitop3_b32 v7, v7, v{36+j}, v{40+j} bitop3:0xf6")
    a(f"""v_and_b32 v7, s{sFF}, v7
    v_cmp_ne_u32 vcc, 0, v7""")
    poll_tail("L_fpoll", "L_fgo")
    stamp(10)
    a(f"""v_pk_add_f32 v[32:33], v[32:33], v[36:37]
    v_pk_add_f32 v[34:35], v[34:35], v[38:39]""")
    xreduce4(32)
    for k in (8, 4, 2, 1):
        a(f"v_add_f32_dpp v32, v32, v32 row_ror:{k} row_mask:0xf bank_mask:0xf")
    round_bf16(32, "v32")
    a(f"""v_add_f32 v32, v21, v32
    v_cvt_pk_bf16_f32 v32, v32, v32
    s_mov_b32 exec_lo, 0x00010001
    s_mov_b32 exec_hi, 0x00010001
    buffer_store_short v32, v20, s[{sOUT}:{sOUT+3}], s{sC} offen
    s_cmp_lg_u32 s2, 0
    s_cbranch_scc1 L_noep
    s_mov_b64 exec, 1
    v_mov_b32 v6, 0
    v_mov_b32 v7, s{sTAG}
    buffer_store_dword v7, v6, s[{sWS}:{sWS+3}], 0 offen sc1
    L_noep:""")
    stamp(11)
    a("s_branch L_kdone")

    W2D = WD + 32
    a(f"""L_frole:
    s_lshl_b32 s{sA}, s{sKC}, 7
    s_lshl_b32 s{sB}, s{sW}, 5
    s_add_u32 s{sA}, s{sA}, s{sB}
    s_mul_i32 s{sB}, s{sA}, 3584
    s_lshl_b32 s{sC}, s{sCB}, 7
    s_add_u32 s{sB}, s{sB}, s{sC}
    s_movk_i32 s{sC}, 3584
    v_mul_u32_u24 v20, s{sC}, v{vI}
    v_and_b32 v7, 7, v0
    v_lshl_add_u32 v20, v7, 4, v20
    v_lshl_add_u32 v21, v7, 2, v{vI}
    v_lshlrev_b32 v21, 1, v21
    s_lshl_b32 s{sA}, s{sA}, 1
    buffer_load_short_d16_hi v22, v21, s[{sX}:{sX+3}], s{sA} offen
    s_mov_b32 exec_lo, 0x00ff00ff
    s_mov_b32 exec_hi, 0x00ff00ff
    s_mov_b32 s{sC}, s{sB}""")
    for t in range(8):
        a(f"buffer_load_dwordx4 v[{WD+4*t}:{WD+4*t+3}], v20, s[{sW1}:{sW1+3}], s{sC} offen nt")
        if t < 7:
            a(f"s_add_u32 s{sC}, s{sC}, {4*3584}")
    a(f"""s_mov_b32 exec_lo, 0xff00ff00
    s_mov_b32 exec_hi, 0xff00ff00""")
    for t in range(8):
        a(f"buffer_load_dwordx4 v[{WD+4*t}:{WD+4*t+3}], v20, s[{sW3}:{sW3+3}], s{sB} offen nt")
        if t < 7:
            a(f"s_add_u32 s{sB}, s{sB}, {4*3584}")
    a(f"""s_mov_b64 exec, -1
    s_lshl2_add_u32 s{sT2}, s{sCB}, s{sKC}
    s_lshl_b32 s{sC}, s{sT2}, 14             ; 16 rows * 1024
    s_lshl_b32 s{sB}, s{sW}, 8
    s_add_u32 s{sC}, s{sC}, s{sB}""")
    for t in range(4):
        a(f"buffer_load_dwordx4 v[{W2D+4*t}:{W2D+4*t+3}], v{vWo}, s[{sW2}:{sW2+3}], s{sC} offen nt")
        if t < 3:
            a(f"s_add_u32 s{sC}, s{sC}, 4096")
    a(f"""v_mov_b32 v23, 0x3f803f80
    v_and_b32 v7, 1, v2
    v_lshlrev_b32 v7, 4, v7
    v_mov_b32 v6, 0xffff
    v_lshlrev_b32 v6, v7, v6
    v_and_b32 v23, v23, v6
    v_bfe_u32 v7, v2, 1, 2""")
    for i in range(4):
        a(f"v_cmp_eq_u32 vcc, {i}, v7")
        a(f"v_cndmask_b32 v{AS+i}, 0, v23, vcc")
        a(f"v_mov_b32 v{AS+4+i}, v{AS+i}")
    a(f"""s_lshl_b32 s{sA}, s{sKC}, 14
    s_lshl_b32 s{sB}, s{sW}, 7
    s_add_u32 s{sA}, s{sA}, s{sB}
    s_add_u32 s{sA}, s{sA}, {HP}
    v_lshrrev_b32 v6, 3, v0
    v_and_b32 v7, 7, v0
    v_lshlrev_b32 v20, 11, v6
    v_lshl_add_u32 v20, v7, 4, v20
    v_mov_b32 v30, s{sTAG}
    v_mov_b32 v31, s{sTAG}
    s_lshl2_add_u32 s{sB}, s{sT2}, s{sW}
    s_lshl_b32 s{sB}, s{sB}, 4
    s_add_u32 s{sB}, s{sB}, {ST}
    v_mov_b32 v21, 0""")
    stamp(7)
    HD = 52
    a("L_gpoll:")
    for u in range(4):
        a(f"buffer_load_dwordx4 v[{HD+4*u}:{HD+4*u+3}], v20, s[{sWS}:{sWS+3}], s{sA} offen offset:{512*u} sc1")
    a(f"""s_waitcnt vmcnt(0)
    v_xor_b32 v6, v{HD+3}, v{vT+3}""")
    for u in range(1, 4):
        a(f"v_bitop3_b32 v6, v6, v{HD+4*u+3}, v{vT+3} bitop3:0xf6")
    a(f"""v_and_b32 v6, s{sFF}, v6
    v_cmp_ne_u32 vcc, 0, v6""")
    poll_tail("L_gpoll", "L_ggo")
    stamp(8)
    a(f"""v_pk_add_f32 v[{HD}:{HD+1}], v[{HD}:{HD+1}], v[{HD+4}:{HD+5}]
    v_pk_add_f32 v[{HD+2}:{HD+3}], v[{HD+2}:{HD+3}], v[{HD+6}:{HD+7}]
    v_pk_add_f32 v[{HD+8}:{HD+9}], v[{HD+8}:{HD+9}], v[{HD+12}:{HD+13}]
    v_pk_add_f32 v[{HD+10}:{HD+11}], v[{HD+10}:{HD+11}], v[{HD+14}:{HD+15}]
    v_pk_add_f32 v[{HD}:{HD+1}], v[{HD}:{HD+1}], v[{HD+8}:{HD+9}]
    v_pk_add_f32 v[{HD+2}:{HD+3}], v[{HD+2}:{HD+3}], v[{HD+10}:{HD+11}]
    v_and_b32 v22, s{sHI}, v22""")
    xreduce4(HD)
    a(f"v_add_f32_dpp v{HD}, v{HD}, v{HD} row_ror:8 row_mask:0xf bank_mask:0xf")
    round_bf16(HD, f"v{HD}")
    a(f"""v_add_f32 v{HD}, v22, v{HD}
    v_cvt_pk_bf16_f32 v{HD}, v{HD}, v{HD}
    v_and_b32 v22, s{sHI}, v{HD}""")
    a(f"v_add_f32_dpp v6, v22, v22 row_ror:4 row_mask:0xf bank_mask:0xf")
    wave_sum_to_sgpr(6, sT0, steps=(2, 1))
    a(f"""v_mov_b32 v28, 0x3d000000
    v_mul_f32 v28, s{sT0}, v28
    v_sub_f32 v6, v22, v28
    v_mul_f32 v6, v6, v6""")
    wave_sum_to_sgpr(6, sT0, steps=(4, 2, 1))
    a(f"""v_mov_b32 v29, s{sT0}
    s_mov_b64 exec, 1""")
    pub_store(28, 21, sB)
    a("s_mov_b64 exec, -1")
    stamp(9)
    gemv(HD, 8, WD, "0x3", DD)
    a(f"""s_lshl_b32 s{sC}, s{sW}, 10
    s_add_u32 s{sC}, s{sC}, {L_RED}
    v_lshl_add_u32 v6, v0, 4, s{sC}
    v_bfe_u32 v7, v0, 1, 1
    v_lshlrev_b32 v7, 3, v7
    v_lshl_add_u32 v7, v3, 1, v7
    v_bfe_u32 v20, v0, 3, 1
    v_add_u32 v7, v7, v20                 ; c
    v_bfe_u32 v20, v0, 2, 1
    v_lshl_add_u32 v7, v20, 4, v7
    v_and_b32 v20, 1, v0
    v_lshl_add_u32 v7, v20, 5, v7         ; + 16*q
    v_lshlrev_b32 v7, 4, v7
    ds_write_b128 v6, v[{DD}:{DD+3}]
    v_lshlrev_b32 v20, 10, v3
    v_lshl_add_u32 v20, v2, 4, v20
    s_lshl_b32 s{sA}, s{sCB}, 12
    s_add_u32 s{sA}, s{sA}, {GP}
    s_lshl_b32 s{sB}, s{sKC}, 8
    s_add_u32 s{sB}, s{sB}, s{sA}
    s_lshl_b32 s{sC}, s{sKC}, 10
    s_add_u32 s{sA}, s{sA}, s{sC}
    s_lshl_b32 s{sC}, s{sCB}, 8
    s_add_u32 s{sC}, s{sC}, {ST}
    v_lshlrev_b32 v21, 4, v2
    s_waitcnt lgkmcnt(0)
    s_barrier
    s_cmp_lg_u32 s{sW}, 0
    s_cbranch_scc1 L_spoll""")
    for w in range(4):
        a(f"ds_read_b128 v[{HD+4*w}:{HD+4*w+3}], v7 offset:{L_RED+1024*w}")
    a(f"""s_waitcnt lgkmcnt(2)
    v_pk_add_f32 v[{HD}:{HD+1}], v[{HD}:{HD+1}], v[{HD+4}:{HD+5}]
    v_pk_add_f32 v[{HD+2}:{HD+3}], v[{HD+2}:{HD+3}], v[{HD+6}:{HD+7}]
    s_waitcnt lgkmcnt(0)
    v_pk_add_f32 v[{HD+8}:{HD+9}], v[{HD+8}:{HD+9}], v[{HD+12}:{HD+13}]
    v_pk_add_f32 v[{HD+10}:{HD+11}], v[{HD+10}:{HD+11}], v[{HD+14}:{HD+15}]
    v_pk_add_f32 v[{HD}:{HD+1}], v[{HD}:{HD+1}], v[{HD+8}:{HD+9}]
    v_pk_add_f32 v[{HD+2}:{HD+3}], v[{HD+2}:{HD+3}], v[{HD+10}:{HD+11}]
    v_bfi_b32 v{HD+3}, s{sFF}, v{vT+3}, v{HD+3}""")
    pub_store(HD, 20, sB)
    a(f"""L_spoll:
    buffer_load_dwordx4 v[28:31], v21, s[{sWS}:{sWS+3}], s{sC} offen sc1
    s_waitcnt vmcnt(0)
    v_cmp_ne_u32 vcc, s{sTAG}, v31""")
    poll_tail("L_spoll", "L_sgo")
    stamp(10)
    a(f"v_add_f32_dpp v6, v28, v28 row_ror:8 row_mask:0xf bank_mask:0xf")
    for k in (4, 2, 1):
        a(f"v_add_f32_dpp v6, v6, v6 row_ror:{k} row_mask:0xf bank_mask:0xf")
    a(f"""v_mul_f32 v6, 0x3d800000, v6         ; mean
    v_sub_f32 v28, v28, v6
    v_mul_f32 v28, v28, v28
    v_fmac_f32 v29, 0x42000000, v28""")
    for k in (8, 4, 2, 1):
        a(f"v_add_f32_dpp v29, v29, v29 row_ror:{k} row_mask:0xf bank_mask:0xf")
    round_bf16(6, "v6")
    a(f"""v_mul_f32 v29, 0x3b000000, v29
    v_sub_f32 v6, 0, v6""")
    round_bf16(29, "v29")
    a(f"v_add_f32 v29, {hex(EPS)}, v29")
    round_bf16(29, "v29")
    a(f"v_sqrt_f32 v29, v29")
    round_bf16(29, "v29")
    a(f"""v_rcp_f32 v29, v29
    L_upoll:
    buffer_load_dwordx4 v[32:35], v19, s[{sWS}:{sWS+3}], s{sA} offen sc1
    s_waitcnt vmcnt(0)
    v_xor_b32 v7, v35, v{vT+3}
    v_and_b32 v7, s{sFF}, v7
    v_cmp_ne_u32 vcc, 0, v7""")
    poll_tail("L_upoll", "L_ugo")
    stamp(11)
    xreduce4(32)
    a(f"""v_mov_b32_dpp v33, v32 quad_perm:[0,0,2,2] row_mask:0xf bank_mask:0xf
    v_fmac_f32_dpp v33, v32, v6 quad_perm:[1,1,3,3] row_mask:0xf bank_mask:0xf
    v_mul_f32 v33, v33, v29""")
    round_bf16(33, "v33")
    a(f"""v_mul_f32 v34, {hex(LOG2E | 0x80000000)}, v33
    v_exp_f32 v34, v34
    v_add_f32 v34, 1.0, v34
    v_rcp_f32 v34, v34
    v_mul_f32 v34, v33, v34""")
    round_bf16(34, "v34")
    a(f"""v_mul_f32_dpp v34, v33, v34 quad_perm:[2,2,2,2] row_mask:0xf bank_mask:0xf
    v_cvt_pk_bf16_f32 v34, v34, v34""")
    gemv(34, 4, W2D, "0xf", DD, bc=lambda t: 4 * t)
    a(f"""s_lshl_b32 s{sA}, s{sT2}, 11
    s_lshl_b32 s{sB}, s{sW}, 9
    s_add_u32 s{sA}, s{sA}, s{sB}
    s_add_u32 s{sA}, s{sA}, {FP}
    s_mov_b32 exec_hi, 0""")
    for j in range(4):
        a(f"v_bfi_b32 v{DD+j}, s{sFF}, v{vT+j}, v{DD+j}")
    a(f"buffer_store_dwordx4 v[{DD}:{DD+3}], v19, s[{sWS}:{sWS+3}], s{sA} offen sc1")
    stamp(12)
    a("L_kdone:")
    flush_stamps(15)
    a("L_end:")
    body = pad(a.text(), verbose=True)
    return single_file(body, 256, 320, LDS_BYTES, 168, sgpr=100)


if __name__ == "__main__":
    open("k1.s", "w").write(gen())
    open("k1_st.s", "w").write(gen(stamps=True))
    open("k1_x.s", "w").write(gen(lpath=False))
    open("k1_x_st.s", "w").write(gen(stamps=True, lpath=False))
```

```python
import sys
from gl import *
from hz import pad

EPOCH = 0
FL1 = 0x400
FL2 = 0x800
QP = 0x1000
ML = 0x11000
ST = 0x15000
GP = 0x18000
HP = 0x34000
FP = 0x44000
QB = 0x100000
OP = 0x80000
STAMPS = 0x200000
L_Q = 0
L_FLAG = 1024
L_ML = 1056
L_DUMMY = 1280
L_OW = 2304
L_RED = L_OW + 8192
L_STQ = L_RED + 4096
LDS_BYTES = L_RED + 4096 + 64
SPIN_LIMIT = 200000
LOG2E = 0x3fb8aa3b
SCALE = 0x3db504f3
EPS = 0x3727c5ac

sK, sV, sWQ, sWS, sX, sOUT = 8, 12, 16, 36, 40, 44
pWO, pW1, pW3, pW2 = 20, 24, 26, 28
sSTR = 32
sG, sS, sW = 48, 49, 50
sTAG, sEP = 51, 52
sT0, sT1, sT2, sT3 = 53, 54, 55, 56
sCNT = 57
sFF, sHI = 58, 59
sROLE, sCOL = 60, 61
sA, sB, sC, sD = 62, 63, 64, 65
sKC, sCB = 66, 67
sXCC = 68
sL2E = 69
sSTAMP0 = 70


def gen(stamps=False, probe=None, win=8, win0=None, kalign=8, flags=True, qdelay=12, ack=False, tlb=False, dbg=False, b0pos=2, pre=0, qdual=True, na=4, qst='', qwarm=True, lst='', fearly=False, p1=2, n1=2, afirst=True, wpol='sc1',
        l2warm=True, spr=(3, 2, 2, 1), lpath=True):
    a = Asm()
    slow = []
    if win0 is None:
        win0 = win
    diag = stamps or probe is not None

    def stamp(k):
        if stamps or (probe is not None and k in (0, 11, probe)):
            a(f"s_memrealtime s[{sSTAMP0+2*k}:{sSTAMP0+2*k+1}]")

    def flush_stamps():
        if not stamps:
            return
        a(f"""s_waitcnt lgkmcnt(0)
        s_mov_b64 exec, 1
        s_lshl_b32 s{sA}, s2, 3
        s_add_u32 s{sA}, s{sA}, s3
        s_lshl_b32 s{sA}, s{sA}, 6
        s_add_u32 s{sA}, s{sA}, {STAMPS}
        v_mov_b32 v1, 0""")
        for k in range(0, 16, 4):
            for j in range(4):
                a(f"v_mov_b32 v{4+j}, s{sSTAMP0+2*(k+j) if k + j < 15 else sCNT}")
            a(f"buffer_store_dwordx4 v[4:7], v1, s[{sWS}:{sWS+3}], s{sA} offen offset:{k*4}")
        a(f"""s_cmp_lg_u32 s3, 4
        s_cbranch_scc1 L_nq
        s_sub_u32 s{sA}, s{sA}, 256
        v_mov_b32 v2, {L_STQ}""")
        for k in range(4):
            a(f"ds_read_b128 v[4:7], v2 offset:{16*k}\ns_waitcnt lgkmcnt(0)\nbuffer_store_dwordx4 v[4:7], v1, s[{sWS}:{sWS+3}], s{sA} offen offset:{k*16}")
        a("L_nq:\ns_waitcnt vmcnt(0)")

    def epoch_to_tag():
        a(f"""s_and_b32 s{sT0}, s{sEP}, 0xff
        s_add_u32 s{sTAG}, s{sT0}, 1
        s_and_b32 s{sTAG}, s{sTAG}, 0xff""")
        for i in (1, 2, 3):
            a(f"""s_bfe_u32 s{sT1}, s{sEP}, {hex(0x80000 | (8*i))}
            s_add_u32 s{sT1}, s{sT1}, 1
            s_and_b32 s{sT1}, s{sT1}, 0xff
            s_cmp_eq_u32 s{sT1}, s{sT0}
            s_addc_u32 s{sT1}, s{sT1}, 0
            s_and_b32 s{sT1}, s{sT1}, 0xff
            s_lshl_b32 s{sT1}, s{sT1}, {8*i}
            s_or_b32 s{sTAG}, s{sTAG}, s{sT1}""")

    def round_bf16(dst, src):
        a(f"v_cvt_pk_bf16_f32 v{dst}, {src}, {src}")
        a(f"v_and_b32 v{dst}, s{sHI}, v{dst}")

    def dpp(op, d, s0, s1, ctl, rm="0xf", bm="0xf"):
        a(f"v_{op}_dpp v{d}, v{s0}{'' if s1 is None else ', v%d' % s1} {ctl} row_mask:{rm} bank_mask:{bm}")

    def wave_red(v, sdst, op="add", steps=(8, 4, 2, 1)):
        for k in steps:
            dpp(op + "_f32", v, v, v, f"row_ror:{k}")
        dpp(op + "_f32", v, v, v, "row_bcast:15", rm="0xa")
        dpp(op + "_f32", v, v, v, "row_bcast:31", rm="0xc")
        a(f"v_readlane_b32 s{sdst}, v{v}, 63")

    def poll_tail(lab, go):
        a(f"""s_cbranch_vccz {go}
        s_add_u32 s{sCNT}, s{sCNT}, 1
        s_cmp_lt_u32 s{sCNT}, {SPIN_LIMIT}
        s_cbranch_scc1 {lab}
        {go}:""")

    def xreduce4(r0):
        a(f"""v_permlane32_swap_b32 v{r0}, v{r0+1}
        v_permlane32_swap_b32 v{r0+2}, v{r0+3}
        v_add_f32 v{r0}, v{r0}, v{r0+1}
        v_add_f32 v{r0+2}, v{r0+2}, v{r0+3}
        v_permlane16_swap_b32 v{r0}, v{r0+2}
        v_add_f32 v{r0}, v{r0}, v{r0+2}""")

    def pub_store(data, voff, soff, n=4):
        ins = f"buffer_store_dwordx4 v[{data}:{data+3}]" if n == 4 else f"buffer_store_dword v{data}"
        ins += f", v{voff}, s[{sWS}:{sWS+3}], s{soff} offen"
        if not lpath:
            a(ins + " sc1")
            return
        l1 = a.label("L_wt"); l2 = a.label("L_wb")
        a(f"""s_cmp_eq_u32 s{sCOL}, 1
        s_cbranch_scc0 {l1}
        {ins} {lst}
        {l2}:""")
        slow.append(f"{l1}:\n{ins} sc1\ns_branch {l2}")

    def build_masks(vM):
        a(f"""v_and_b32 v7, 1, v2
        v_lshlrev_b32 v7, 4, v7
        v_mov_b32 v13, 0xffff
        v_lshlrev_b32 v13, v7, v13
        v_bfe_u32 v7, v2, 1, 2""")
        for i in range(4):
            a(f"v_cmp_eq_u32 vcc, {i}, v7")
            a(f"v_cndmask_b32 v{vM+i}, 0, v13, vcc")

    def flag_poll(name, voff, soff, tmp):
        if not flags:
            return
        a(f"""{name}:
        buffer_load_dword v{tmp}, v{voff}, s[{sWS}:{sWS+3}], s{soff} offen sc1
        s_waitcnt vmcnt(0)
        v_cmp_ne_u32 vcc, s{sTAG}, v{tmp}""")
        poll_tail(name, name + "_go")

    def sum4(r):
        a(f"""s_waitcnt lgkmcnt(2)
        v_pk_add_f32 v[{r}:{r+1}], v[{r}:{r+1}], v[{r+4}:{r+5}]
        v_pk_add_f32 v[{r+2}:{r+3}], v[{r+2}:{r+3}], v[{r+6}:{r+7}]
        s_waitcnt lgkmcnt(0)
        v_pk_add_f32 v[{r+8}:{r+9}], v[{r+8}:{r+9}], v[{r+12}:{r+13}]
        v_pk_add_f32 v[{r+10}:{r+11}], v[{r+10}:{r+11}], v[{r+14}:{r+15}]
        v_pk_add_f32 v[{r}:{r+1}], v[{r}:{r+1}], v[{r+8}:{r+9}]
        v_pk_add_f32 v[{r+2}:{r+3}], v[{r+2}:{r+3}], v[{r+10}:{r+11}]""")

    def tagcheck(acc, regs, tags, mask=True):
        a(f"v_xor_b32 v{acc}, v{regs[0]}, v{tags[0]}")
        for r, t in zip(regs[1:], tags[1:]):
            a(f"v_bitop3_b32 v{acc}, v{acc}, v{r}, v{t} bitop3:0xf6")
        a(f"""v_and_b32 v{acc}, s{sFF}, v{acc}
        v_cmp_ne_u32 vcc, 0, v{acc}""")

    vXS, vXL, vWo = 4, 5, 6
    X, XS, WQ = 16, 20, 64
    stamp(0)
    a(f"""s_load_dwordx2 s[{sX}:{sX+1}], s[0:1], 0
    s_load_dwordx2 s[{sWQ}:{sWQ+1}], s[0:1], 24
    s_load_dwordx4 s[{sK}:{sK+3}], s[0:1], 8
    s_load_dwordx2 s[{sWS}:{sWS+1}], s[0:1], 88
    v_readfirstlane_b32 s3, v0
    s_cmpk_ge_u32 s2, 256
    s_cbranch_scc1 L_end
    s_lshr_b32 s3, s3, 6
    s_cbranch_scc0 L_q
    s_cmp_lg_u32 s3, 4
    s_cbranch_scc1 L_kreg
    s_cmp_ge_u32 s2, 16
    s_cbranch_scc1 L_100
    s_getpc_b64 s[{sC}:{sD}]
    L_pc:
    v_lshlrev_b32 v7, 7, v0
    v_add_u32 v7, 0xffff8000, v7
    global_load_dword v140, v7, s[{sC}:{sD}]
    v_add_u32 v7, 0x2000, v7
    v_min_u32 v7, L_end-L_pc, v7
    global_load_dword v140, v7, s[{sC}:{sD}]
    s_branch L_100
    L_q:
    s_mov_b32 s{sX+3}, 0x20000
    s_movk_i32 s{sX+2}, 1024
    s_mov_b32 s{sWQ+3}, s{sX+3}
    s_lshl_b32 s{sWQ+2}, 1, 22
    s_bfe_u32 s{sKC}, s2, 0x20003
    s_lshr_b32 s{sCB}, s2, 5
    s_and_b32 s{sG}, s2, 7
    v_lshlrev_b32 v{vXS}, 4, v0
    v_lshrrev_b32 v{vXL}, 3, v0
    v_lshlrev_b32 v{vWo}, 17, v{vXL}
    v_and_b32 v7, 7, v0
    v_lshl_add_u32 v{vWo}, v7, 4, v{vWo}
    v_lshlrev_b32 v{vXL}, 5, v{vXL}
    s_lshl_b32 s{sA}, s{sKC}, 8
    s_lshl_b32 s{sB}, s{sKC}, 10
    s_add_u32 s{sB}, s{sB}, s{sG}
    s_lshl3_add_u32 s{sB}, s{sB}, s{sCB}
    s_lshl_b32 s{sB}, s{sB}, 7
    s_waitcnt lgkmcnt(0)
    buffer_load_dwordx4 v[{X}:{X+3}], v{vXS}, s[{sX}:{sX+3}], 0 offen
    buffer_load_dwordx4 v[{XS}:{XS+3}], v{vXL}, s[{sX}:{sX+3}], s{sA} offen
    buffer_load_dwordx4 v[{XS+4}:{XS+7}], v{vXL}, s[{sX}:{sX+3}], s{sA} offen offset:16""")
    nfirst = 0 if diag else 1
    for t in range(16):
        if t == nfirst:
            a(f"""s_branch L_q2
            .p2align 8
            L_100:
            s_branch L_kreg
            L_q2:
            s_setprio 3
            s_movk_i32 s{sD}, 0x2000""")
        if t > 0:
            a(f"s_add_u32 s{sB}, s{sB}, s{sD}")
        a(f"buffer_load_dwordx4 v[{WQ+4*t}:{WQ+4*t+3}], v{vWo}, s[{sWQ}:{sWQ+3}], s{sB} offen nt")
    if b0pos == 0: a("s_barrier")

    vM, vT3 = 8, 12
    U, vA, D, PP = 28, 36, 44, 48
    stamp(1)
    a(f"""s_load_dword s{sEP}, s[{sWS}:{sWS+1}], {EPOCH}
    s_mov_b32 s{sWS+3}, s{sX+3}
    s_lshl_b32 s{sWS+2}, 1, 28
    s_lshr_b32 s{sS}, s2, 3
    v_and_b32 v2, 15, v0
    v_lshrrev_b32 v3, 4, v0
    s_mov_b32 s{sFF}, 0xff
    s_mov_b32 s{sHI}, 0xffff0000
    s_mov_b32 s{sCNT}, 0""")
    build_masks(vM)
    a(f"""s_getreg_b32 s{sXCC}, hwreg(HW_REG_XCC_ID)
    s_and_b32 s{sXCC}, s{sXCC}, 0xff
    v_and_b32 v7, 7, v0
    v_lshl_add_u32 v7, v3, 3, v7
    v_lshlrev_b32 v7, 4, v7
    s_lshl_b32 s{sA}, s{sG}, 13
    s_add_u32 s{sA}, s{sA}, {QP}
    s_lshl_b32 s{sB}, s{sKC}, 11
    s_add_u32 s{sB}, s{sB}, s{sA}
    s_lshl_b32 s{sC}, s{sCB}, 8
    s_add_u32 s{sB}, s{sB}, s{sC}
    s_add_u32 s{sC}, s{sA}, 4096
    v_mov_b32 v13, s{sXCC}""")
    if qdual and qwarm:
        a(f"""v_lshlrev_b32 v14, 7, v0
        s_mov_b64 exec, 3
        buffer_load_dword v15, v14, s[{sWS}:{sWS+3}], s{sB} offen sc1
        s_mov_b64 exec, -1""")
    nx = 1 if (qdual and qwarm) else 0
    a(f"s_waitcnt vmcnt({18+nx})")
    if b0pos == 1: a("s_barrier")
    stamp(2)
    for i in range(4):
        a(f"v_lshlrev_b32 v{U+2*i}, 16, v{X+i}")
        a(f"v_and_b32 v{U+2*i+1}, s{sHI}, v{X+i}")
    a(f"""v_pk_add_f32 v[{vA}:{vA+1}], v[{U}:{U+1}], v[{U+2}:{U+3}]
    v_pk_add_f32 v[{vA+2}:{vA+3}], v[{U+4}:{U+5}], v[{U+6}:{U+7}]
    v_pk_add_f32 v[{vA}:{vA+1}], v[{vA}:{vA+1}], v[{vA+2}:{vA+3}]
    v_add_f32 v{vA}, v{vA}, v{vA+1}""")
    wave_red(vA, sT0)
    a(f"""v_mov_b32 v14, 0x3b000000
    v_mul_f32 v14, s{sT0}, v14""")
    for i in range(4):
        a(f"v_pk_add_f32 v[{U+2*i}:{U+2*i+1}], v[{U+2*i}:{U+2*i+1}], v[14:15] op_sel_hi:[1,0] neg_lo:[0,1] neg_hi:[0,1]")
    a(f"v_pk_mul_f32 v[{vA}:{vA+1}], v[{U}:{U+1}], v[{U}:{U+1}]")
    for i in range(1, 4):
        a(f"v_pk_fma_f32 v[{vA}:{vA+1}], v[{U+2*i}:{U+2*i+1}], v[{U+2*i}:{U+2*i+1}], v[{vA}:{vA+1}]")
    a(f"v_add_f32 v{vA}, v{vA}, v{vA+1}")
    wave_red(vA, sT0)
    round_bf16(14, "v14")
    a(f"""v_mov_b32 v40, 0x3b000000
    v_mul_f32 v40, s{sT0}, v40""")
    round_bf16(40, "v40")
    a(f"v_add_f32 v40, {hex(EPS)}, v40")
    round_bf16(40, "v40")
    a(f"v_sqrt_f32 v40, v40")
    round_bf16(40, "v40")
    a(f"v_rcp_f32 v40, v40")
    a(f"s_waitcnt vmcnt({16+nx})")
    for j in range(8):
        u = U + 2 * (j % 4)
        a(f"""v_lshlrev_b32 v{u}, 16, v{XS+j}
        v_and_b32 v{u+1}, s{sHI}, v{XS+j}
        v_pk_add_f32 v[{u}:{u+1}], v[{u}:{u+1}], v[14:15] op_sel_hi:[1,0] neg_lo:[0,1] neg_hi:[0,1]
        v_cvt_pk_bf16_f32 v{u+1}, v{u}, v{u+1}
        v_lshlrev_b32 v{u}, 16, v{u+1}
        v_and_b32 v{u+1}, s{sHI}, v{u+1}
        v_pk_mul_f32 v[{u}:{u+1}], v[{u}:{u+1}], v[40:41] op_sel_hi:[1,0]
        v_cvt_pk_bf16_f32 v{PP+2*j}, v{u}, v{u}
        v_cvt_pk_bf16_f32 v{PP+2*j+1}, v{u+1}, v{u+1}""")
    if b0pos == 2: a("s_barrier")
    stamp(3)
    a(f"s_waitcnt lgkmcnt(0)")
    epoch_to_tag()
    a(f"""v_lshlrev_b32 v14, 3, v0
    v_add_u32 v14, 24, v14
    v_alignbit_b32 v{vT3}, s{sTAG}, s{sTAG}, v14""")
    stamp(8)

    def selA(t):
        s = vA + 4 * (t & 1)
        for i in range(4):
            a(f"v_and_b32 v{s+i}, v{PP+t}, v{vM+i}")
    selA(0)
    for t in range(16):
        if t < 15:
            selA(t + 1)
        a(f"s_waitcnt vmcnt({15-t+nx})")
        if b0pos == 3 + t: a("s_barrier")
        s = vA + 4 * (t & 1)
        c = "0" if t == 0 else f"v[{D}:{D+3}]"
        a(f"v_mfma_f32_16x16x32_bf16 v[{D}:{D+3}], v[{s}:{s+3}], v[{WQ+4*t}:{WQ+4*t+3}], {c}")
    for i in range(4):
        a(f"v_mov_b32 v{U+i}, v{D+i}")
    for i in range(4):
        a(f"v_permlane32_swap_b32 v{D+i}, v{U+i}")
    for i in range(4):
        dpp("add_f32", D + i, U + i, D + i, "row_ror:8")
    a(f"""v_bfi_b32 v{D+2}, s{sFF}, v13, v{D+2}
    v_bfi_b32 v{D+3}, s{sFF}, v{vT3}, v{D+3}
    s_mov_b64 exec, 0x00ff00ff
    """)
    if qdual:
        a(f"""buffer_store_dwordx4 v[{D}:{D+3}], v7, s[{sWS}:{sWS+3}], s{sB} offen {qst}
        s_add_u32 s{sB}, s{sB}, {QB - QP}""")
    a(f"""buffer_store_dwordx4 v[{D}:{D+3}], v7, s[{sWS}:{sWS+3}], s{sB} offen sc1
    s_mov_b64 exec, -1""")
    if p1: a("s_barrier")
    stamp(4)
    a(f"""v_and_b32 v14, 8, v0
    v_add_u32 v7, v7, v14""")
    if ack:
        a("s_waitcnt vmcnt(0)")
    if qdelay:
        a(f"s_sleep {qdelay}")
    if qdual and not afirst:
        a(f"""s_add_u32 s{sA}, s{sA}, {QB - QP}
        s_add_u32 s{sC}, s{sC}, {QB - QP}""")
    stamp(7)
    G = WQ

    def qloads():
        for kc in range(4):
            for h in range(2):
                o = kc * 2048 + h * 1024
                r = G + 4 * (kc * 2 + h)
                a(f"buffer_load_dwordx4 v[{r}:{r+3}], v{vXS}, s[{sWS}:{sWS+3}], s{sA if o < 4096 else sC} offen offset:{o % 4096} sc1")
    a("L_qpoll:")
    for kc in range(4):
        for h in range(2):
            o = kc * 2048 + h * 1024
            r = G + 4 * (kc * 2 + h)
            a(f"buffer_load_dwordx4 v[{r}:{r+3}], v{vXS}, s[{sWS}:{sWS+3}], s{sA if o < 4096 else sC} offen offset:{o % 4096} sc1")
    a("L_qchk:\ns_waitcnt vmcnt(0)")
    tagcheck(14, [G + 4 * k + 3 for k in range(8)], [vT3] * 8)
    if qdual:
        a(f"""s_cbranch_vccz L_qgo
        s_add_u32 s{sCNT}, s{sCNT}, 1
        s_cmp_eq_u32 s{sCNT}, 1
        s_cselect_b32 s{sT0}, {0 if afirst else QP - QB}, 0
        s_cmp_eq_u32 s{sCNT}, {na + 1}
        s_cselect_b32 s{sT0}, {QB - QP}, s{sT0}
        s_add_u32 s{sA}, s{sA}, s{sT0}
        s_add_u32 s{sC}, s{sC}, s{sT0}
        s_cmp_lt_u32 s{sCNT}, {SPIN_LIMIT}
        s_cbranch_scc1 L_qpoll
        L_qgo:""")
    else:
        poll_tail("L_qpoll", "L_qgo")
    stamp(5)
    for h in range(2):
        r = G + 4 * h
        a(f"v_xor_b32 v15, v{r+2}, v13" if h == 0 else f"v_bitop3_b32 v15, v15, v{r+2}, v13 bitop3:0xf6")
        for kc in range(1, 4):
            q = G + 4 * (kc * 2 + h)
            a(f"v_bitop3_b32 v15, v15, v{q+2}, v13 bitop3:0xf6")
            a(f"v_pk_add_f32 v[{r}:{r+1}], v[{r}:{r+1}], v[{q}:{q+1}]")
            a(f"v_pk_add_f32 v[{r+2}:{r+3}], v[{r+2}:{r+3}], v[{q+2}:{q+3}]")
        a(f"v_cvt_pk_bf16_f32 v{r}, v{r}, v{r+1}")
        a(f"v_cvt_pk_bf16_f32 v{r+1}, v{r+2}, v{r+3}")
        a(f"ds_write_b64 v7, v[{r}:{r+1}] offset:{L_Q + 512*h}")
    a(f"""v_and_b32 v15, s{sFF}, v15
    v_cmp_ne_u32 vcc, 0, v15
    s_cmp_eq_u64 vcc, 0
    s_cselect_b32 s{sA}, 1, 0
    v_mov_b32 v14, s{sA}
    v_mov_b32 v15, {L_FLAG}
    ds_write_b32 v15, v14""")
    if stamps:
        stamp(6)
        a(f"s_waitcnt lgkmcnt(0)\nv_mov_b32 v15, {L_STQ}")
        for k in range(16):
            a(f"v_mov_b32 v14, s{sSTAMP0+2*k if k < 15 else sCNT}\nds_write_b32 v15, v14 offset:{4*k}")
    a(f"""s_waitcnt lgkmcnt(0)
    s_barrier
    s_endpgm""")

    vKo, vVo = 4, 5
    KD, VD, WD = 32, 64, 96
    W2D = WD + 32
    vM, vPM, vT, vWo, vI = 8, 12, 24, 14, 15
    vQa, vOa, vMa, vMr = 16, 17, 18, 23
    vWA = 142
    a(f""".p2align {kalign}
    L_kreg:
    s_load_dwordx2 s[{pWO}:{pWO+1}], s[0:1], 32
    s_load_dwordx4 s[{pW1}:{pW1+3}], s[0:1], 48
    s_load_dwordx4 s[{pW2}:{pW2+3}], s[0:1], 64
    v_and_b32 v0, 63, v0
    s_and_b32 s{sG}, s2, 7
    s_lshr_b32 s{sS}, s2, 3
    s_sub_u32 s{sW}, s3, 1
    v_and_b32 v2, 15, v0
    v_lshrrev_b32 v3, 4, v0
    v_and_b32 v6, 7, v2
    v_lshlrev_b32 v{vKo}, 8, v6
    v_lshrrev_b32 v6, 3, v2
    v_lshl_add_u32 v{vKo}, v6, 6, v{vKo}
    v_lshl_add_u32 v{vKo}, v3, 4, v{vKo}
    v_lshlrev_b32 v{vVo}, 10, v3
    v_lshl_add_u32 v{vVo}, v2, 4, v{vVo}
    s_lshl_b32 s{sA}, s{sG}, 23
    s_lshl_b32 s{sB}, s{sS}, 15
    s_add_u32 s{sA}, s{sA}, s{sB}
    s_lshl_b32 s{sB}, s{sW}, 13
    s_add_u32 s{sA}, s{sA}, s{sB}
    s_add_u32 s{sA}, s{sA}, {28672*256}
    s_add_u32 s{sB}, s{sA}, 4096
    s_mov_b32 s{sV+3}, 0x20000
    s_lshl_b32 s{sV+2}, 1, 26
    s_waitcnt lgkmcnt(0)
    s_load_dword s{sEP}, s[{sWS}:{sWS+1}], {EPOCH}
    s_mov_b32 s{sV}, s{sK+2}
    s_mov_b32 s{sV+1}, s{sK+3}
    s_mov_b32 s{sK+2}, s{sV+2}
    s_mov_b32 s{sK+3}, s{sV+3}
    s_mov_b32 s{sWS+3}, s{sV+3}
    s_lshl_b32 s{sWS+2}, 1, 28""")
    if l2warm:
        a(f"""s_cmp_lg_u32 s{sW}, 0
        s_cbranch_scc1 L_nowarm
        s_lshl_b32 s{sT0}, s{sG}, 16
        s_lshl_b32 s{sT1}, s{sS}, 11
        s_add_u32 s{sT0}, s{sT0}, s{sT1}
        s_add_u32 s{sT0}, s{sT0}, {OP}
        v_lshlrev_b32 v20, 7, v0
        v_add_u32 v20, s{sT0}, v20
        s_lshr_b32 s{sT0}, s{sS}, 3
        s_lshl_b32 s{sT0}, s{sT0}, 3
        s_add_u32 s{sT0}, s{sT0}, s{sG}
        s_min_u32 s{sT0}, s{sT0}, 27
        s_lshl_b32 s{sT1}, s{sT0}, 12
        s_and_b32 s{sT2}, s{sS}, 7
        s_lshl_b32 s{sT2}, s{sT2}, 9
        s_add_u32 s{sT1}, s{sT1}, s{sT2}
        s_add_u32 s{sT1}, s{sT1}, {GP - 16*128}
        v_lshlrev_b32 v21, 7, v0
        v_add_u32 v21, s{sT1}, v21
        v_cmp_lt_u32 vcc, 15, v0
        v_cndmask_b32 v20, v20, v21, vcc
        s_and_b32 s{sT1}, s{sS}, 15
        s_lshl4_add_u32 s{sT1}, s{sG}, s{sT1}
        s_lshl_b32 s{sT1}, s{sT1}, 7
        s_add_u32 s{sT1}, s{sT1}, {ML}
        v_writelane_b32 v20, s{sT1}, 20
        s_lshl_b32 s{sT1}, s{sT0}, 8
        s_and_b32 s{sT2}, s{sS}, 1
        s_lshl_b32 s{sT2}, s{sT2}, 7
        s_add_u32 s{sT1}, s{sT1}, s{sT2}
        s_add_u32 s{sT1}, s{sT1}, {ST}
        v_writelane_b32 v20, s{sT1}, 21
        s_lshl_b32 s{sT1}, s{sG}, 8
        s_add_u32 s{sT1}, s{sT1}, s{sT2}
        s_add_u32 s{sT1}, s{sT1}, {FL2}
        v_writelane_b32 v20, s{sT1}, 22
        s_lshl_b32 s{sT1}, s{sG}, 7
        s_add_u32 s{sT1}, s{sT1}, {FL1}
        v_writelane_b32 v20, s{sT1}, 23
        s_mov_b64 exec, 0xffffff
        buffer_load_dword v21, v20, s[{sWS}:{sWS+3}], 0 offen {wpol}
        s_mov_b64 exec, -1
        L_nowarm:""")
    if tlb:
        a(f"""s_load_dword s{sT0}, s[{sV}:{sV+1}], s{sA}
        s_lshl_b32 s{sC}, s{sG}, 19
        s_load_dword s{sT0}, s[{pWO}:{pWO+1}], s{sC}
        s_load_dword s{sT0}, s[{pW1}:{pW1+1}], 0
        s_load_dword s{sT0}, s[{pW3}:{pW3+1}], 0
        s_load_dword s{sT0}, s[{pW2}:{pW2+1}], 0
        s_load_dword s{sT0}, s[{pW2+2}:{pW2+3}], 0""")

    def kvload(n):
        if n < 8:
            tau, eta, lam = n >> 2, (n >> 1) & 1, n & 1
            r = KD + n * 4
            a(f"buffer_load_dwordx4 v[{r}:{r+3}], v{vKo}, s[{sK}:{sK+3}], s{sA+tau} offen offset:{eta*2048+lam*128} nt")
        else:
            k = n - 8
            tau, i = divmod(k, 4)
            r = VD + k * 4
            a(f"buffer_load_dwordx4 v[{r}:{r+3}], v{vVo}, s[{sV}:{sV+3}], s{sA+tau} offen offset:{i*256} nt")
    if b0pos == 0:
        for n in range(win0):
            if n == pre: a("s_barrier")
            kvload(n)
        if not dbg: stamp(1)
    else:
        for n in range(pre):
            kvload(n)
    a(f"""s_mov_b32 s{sX+3}, s{sV+3}
    s_movk_i32 s{sX+2}, 1024
    s_mov_b32 s{sOUT}, s{pW2+2}
    s_mov_b32 s{sOUT+1}, s{pW2+3}
    s_movk_i32 s{sOUT+2}, 1024
    s_mov_b32 s{sOUT+3}, s{sV+3}
    s_mov_b32 s{sFF}, 0xff
    s_mov_b32 s{sHI}, 0xffff0000
    s_mov_b32 s{sCNT}, 0
    s_mov_b32 s{sL2E}, {hex(LOG2E)}""")
    build_masks(vM)
    a(f"""v_or_b32 v{vPM}, v{vM}, v{vM+2}
    v_or_b32 v{vPM+1}, v{vM+1}, v{vM+3}
    v_cmp_gt_u32 vcc, 8, v2""")
    for i in range(4):
        a(f"v_cndmask_b32 v{vM+i}, 0, v{vM+i}, vcc")
    a(f"""v_and_b32 v{vI}, 1, v3
    v_lshlrev_b32 v{vI}, 1, v{vI}
    v_lshrrev_b32 v6, 1, v3
    v_add_u32 v{vI}, v{vI}, v6
    s_and_b32 s{sKC}, s{sS}, 3
    s_lshr_b32 s{sC}, s{sS}, 2
    s_lshl2_add_u32 s{sT3}, s{sG}, s{sC}   ; H (O role)
    s_sub_u32 s{sCB}, s{sC}, 4
    s_lshl_b32 s{sCB}, s{sCB}, 3
    s_add_u32 s{sCB}, s{sCB}, s{sG}
    s_cmp_lt_u32 s{sS}, 16
    s_cselect_b32 s{sROLE}, 0, 1
    s_cselect_b32 s{sCB}, 0, s{sCB}
    s_cmp_ge_u32 s{sCB}, 28
    s_cselect_b32 s{sROLE}, 2, s{sROLE}
    s_lshl2_add_u32 s{sT2}, s{sCB}, s{sKC} ; f (F role)
    v_lshrrev_b32 v6, 2, v2
    v_lshlrev_b32 v{vQa}, 8, v6
    v_and_b32 v7, 2, v2
    v_lshl_add_u32 v{vQa}, v7, 5, v{vQa}
    v_lshl_add_u32 v{vQa}, v3, 4, v{vQa}
    v_lshlrev_b32 v{vOa}, 9, v3
    v_lshl_add_u32 v{vOa}, v2, 5, v{vOa}
    s_lshl_b32 s{sC}, s{sW}, 11
    s_add_u32 s{sC}, s{sC}, {L_OW}
    v_add_u32 v{vOa}, s{sC}, v{vOa}
    v_lshlrev_b32 v{vMr}, 4, v6
    v_add_u32 v{vMr}, {L_ML}, v{vMr}
    s_lshl_b32 s{sC}, s{sW}, 2
    v_add_u32 v{vMa}, s{sC}, v{vMr}
    v_lshlrev_b32 v6, 2, v0
    v_add_u32 v6, {L_DUMMY}, v6
    v_and_b32 v7, 0x33, v0
    v_cmp_eq_u32 vcc, 0, v7
    v_cndmask_b32 v{vMa}, v6, v{vMa}, vcc
    v_lshlrev_b32 v{vWo}, 10, v{vI}
    v_lshl_add_u32 v{vWo}, v2, 4, v{vWo}  ; i(g4)*1024 + c*16
    v_lshlrev_b32 v19, 4, v0""")
    if p1:
        a("s_barrier")
        for n in range(n1):
            if n >= p1:
                a(f"s_waitcnt vmcnt({p1 - 1})")
            kvload(n)
        a("s_barrier")
        if not dbg: stamp(1)
        for n in range(n1, 16):
            if n >= win:
                a(f"s_waitcnt vmcnt({win - 1})")
            kvload(n)
    else:
        if b0pos != 0:
            a("s_barrier")
            for n in range(pre, win0):
                kvload(n)
            if not dbg: stamp(1)
        for n in range(win0, 16):
            a(f"s_waitcnt vmcnt({min(win, n) - 1})")
            kvload(n)
    a("s_waitcnt lgkmcnt(0)")
    epoch_to_tag()
    a(f"v_lshlrev_b32 v6, 3, v0")
    for j in range(4):
        a(f"v_alignbit_b32 v{vT+j}, s{sTAG}, s{sTAG}, v6")
        if j < 3:
            a(f"v_add_u32 v6, 8, v6")
    a(f"""s_mov_b32 s{sSTR+1}, 0
    v_mov_b32 v7, 0
    {'s_cmp_eq_u32 s%d, 1' % sROLE if fearly else ''}
    {'s_cbranch_scc1 L_waf' if fearly else ''}
    s_lshl_b32 s{sC}, s{sT3}, 17
    s_lshl_b32 s{sD}, s{sW}, 15
    s_add_u32 s{sC}, s{sC}, s{sD}
    s_lshl_b32 s{sD}, s{sKC}, 8
    s_add_u32 s{sC}, s{sC}, s{sD}
    s_cmp_eq_u32 s{sROLE}, 0
    s_cselect_b32 s{sC}, s{sC}, 0
    s_cselect_b32 s{sSTR}, 0x1000, 0
    s_cselect_b32 s{sD}, -1, 0
    v_and_b32 v6, s{sD}, v{vWo}
    v_add_u32 v6, s{sC}, v6
    v_lshl_add_u64 v[{vWA}:{vWA+1}], v[6:7], 0, s[{pWO}:{pWO+1}]
    """)
    WAF = f"""s_lshl_b32 s{sD}, s{sKC}, 7
    s_lshl_b32 s{sC}, s{sW}, 5
    s_add_u32 s{sD}, s{sD}, s{sC}
    s_mul_i32 s{sD}, s{sD}, 3584
    s_lshl_b32 s{sC}, s{sCB}, 7
    s_add_u32 s{sD}, s{sD}, s{sC}
    s_movk_i32 s{sC}, 3584
    v_mul_u32_u24 v6, s{sC}, v{vI}
    v_and_b32 v20, 7, v0
    v_lshl_add_u32 v6, v20, 4, v6
    v_add_u32 v6, s{sD}, v6
    v_lshl_add_u64 v[{vWA}:{vWA+1}], v[6:7], 0, s[{pW1}:{pW1+1}]
    v_lshl_add_u64 v[20:21], v[6:7], 0, s[{pW3}:{pW3+1}]
    v_cmp_gt_u32 vcc, 8, v2
    v_cndmask_b32 v{vWA}, v20, v{vWA}, vcc
    v_cndmask_b32 v{vWA+1}, v21, v{vWA+1}, vcc
    s_movk_i32 s{sSTR}, {4*3584}
"""
    if fearly:
        a("s_branch L_wad\nL_waf:")
        a(WAF)
    a(f"""L_wad:
    s_lshl2_add_u32 s{sC}, s{sG}, s{sW}
    s_lshl_b32 s{sC}, s{sC}, 5
    s_add_u32 s{sC}, s{sC}, s{sS}
    s_lshl_b32 s{sA}, s{sC}, 9
    s_add_u32 s{sA}, s{sA}, {OP}
    s_lshl_b32 s{sB}, s{sC}, 4
    s_add_u32 s{sB}, s{sB}, {ML}
    s_lshl_b32 s{sC}, s{sW}, 4
    s_add_u32 s{sC}, s{sC}, {L_ML}
    v_mov_b32 v22, s{sC}
    s_lshl_b32 s{sC}, s{sW}, 9
    s_add_u32 s{sC}, s{sC}, {L_OW}
    v_lshl_add_u32 v1, v0, 4, s{sC}
    v_mov_b32 v6, {L_FLAG}
    v_mov_b32 v20, {hex(SCALE)}""")
    if not dbg: stamp(2)
    a("s_barrier")
    stamp(3)
    wn = [0]

    def wloads(k):
        for _ in range(k):
            t = wn[0]
            a(f"global_load_dwordx4 v[{WD+4*t}:{WD+4*t+3}], v[{vWA}:{vWA+1}], off nt")
            if t < 7:
                a(f"v_lshl_add_u64 v[{vWA}:{vWA+1}], s[{sSTR}:{sSTR+1}], 0, v[{vWA}:{vWA+1}]")
            wn[0] += 1
    B0, SD = 144, 152
    a(f"""ds_read_b128 v[{B0}:{B0+3}], v{vQa} offset:{L_Q}
    ds_read_b128 v[{B0+4}:{B0+7}], v{vQa} offset:{L_Q+128}
    ds_read_b32 v6, v6
    s_waitcnt vmcnt(8)""")
    wloads(spr[0])
    if not dbg: stamp(13)
    a("s_waitcnt lgkmcnt(0)")
    for lam in range(2):
        for te in range(4):
            r = KD + (te * 2 + lam) * 4
            d = SD + te * 4
            c = "0" if lam == 0 else f"v[{d}:{d+3}]"
            a(f"v_mfma_f32_16x16x32_bf16 v[{d}:{d+3}], v[{r}:{r+3}], v[{B0+4*lam}:{B0+4*lam+3}], {c}")
    wloads(spr[1])
    a(f"v_readfirstlane_b32 s{sCOL}, v6")
    for tau in range(2):
        for i in range(4):
            a(f"v_permlane32_swap_b32 v{SD+8*tau+i}, v{SD+8*tau+4+i}")
    Sx = [SD + 8 * tau + i for tau in range(2) for i in range(4)]
    for s in Sx:
        dpp("add_f32", s, s + 4, s, "quad_perm:[2,3,2,3]")
    P2 = [Sx[0], Sx[2], Sx[4], Sx[6]]
    for s in P2: a(f"v_cvt_pk_bf16_f32 v{s+1}, v{s}, v{s+1}")
    for s in P2: a(f"v_lshlrev_b32 v{s}, 16, v{s+1}\nv_and_b32 v{s+1}, s{sHI}, v{s+1}")
    for s in P2: a(f"v_pk_mul_f32 v[{s}:{s+1}], v[{s}:{s+1}], v[20:21] op_sel_hi:[1,0]")
    for s in P2: a(f"v_cvt_pk_bf16_f32 v{s+1}, v{s}, v{s+1}")
    for s in P2: a(f"v_lshlrev_b32 v{s}, 16, v{s+1}\nv_and_b32 v{s+1}, s{sHI}, v{s+1}")
    a(f"""v_max3_f32 v28, v{Sx[0]}, v{Sx[1]}, v{Sx[2]}
    v_max3_f32 v29, v{Sx[3]}, v{Sx[4]}, v{Sx[5]}
    v_max3_f32 v28, v{Sx[6]}, v{Sx[7]}, v28
    v_max_f32 v28, v28, v29
    v_mov_b32 v29, v28
    v_permlane32_swap_b32 v28, v29
    v_max_f32 v28, v28, v29
    v_mov_b32 v29, v28
    v_permlane16_swap_b32 v28, v29
    v_max_f32 v28, v28, v29
    ds_write_b32 v{vMa}, v28""")
    if not dbg: stamp(14)
    a(f"""s_waitcnt lgkmcnt(0)
    s_barrier
    ds_read_b128 v[28:31], v{vMr}""")
    wloads(spr[2])
    a("s_waitcnt lgkmcnt(0)")
    if dbg: stamp(1)
    a(f"""    v_max3_f32 v28, v28, v29, v30
    v_max_f32 v28, v28, v31
    v_mul_f32 v20, s{sL2E}, v28""")
    for k in range(8):
        a(f"v_fma_f32 v{Sx[k]}, v{Sx[k]}, s{sL2E}, -v20")
    for k in range(8):
        a(f"v_exp_f32 v{Sx[k]}, v{Sx[k]}")
    a(f"""v_pk_add_f32 v[20:21], v[{Sx[0]}:{Sx[1]}], v[{Sx[2]}:{Sx[3]}]
    v_pk_add_f32 v[28:29], v[{Sx[4]}:{Sx[5]}], v[{Sx[6]}:{Sx[7]}]
    v_pk_add_f32 v[20:21], v[20:21], v[28:29]
    v_add_f32 v20, v20, v21
    v_mov_b32 v21, v20
    v_permlane32_swap_b32 v20, v21
    v_add_f32 v20, v20, v21
    v_mov_b32 v21, v20
    v_permlane16_swap_b32 v20, v21
    v_add_f32 v20, v20, v21
    ds_write_b32 v{vMa}, v20 offset:64""")
    XR = [SD + 4, SD + 6, SD + 12, SD + 14, B0, B0 + 2, B0 + 4, B0 + 6]
    for k in range(8):
        a(f"v_cvt_pk_bf16_f32 v{XR[k]+1}, v{Sx[k]}, v{Sx[k]}")
    for k in range(8):
        dpp("and_b32", XR[k], XR[k] + 1, vPM, "quad_perm:[0,0,0,0]")
    for k in range(8):
        dpp("and_b32", XR[k] + 1, XR[k] + 1, vPM + 1, "quad_perm:[0,0,0,0]")
    a(f"""v_mov_b32 v30, s{sTAG}
    v_mov_b32 v31, s{sTAG}""")
    if dbg: stamp(2)
    a(f"""s_waitcnt lgkmcnt(0)
    s_barrier""")
    if dbg: stamp(13)
    a(f"""ds_read_b128 v[40:43], v22
    ds_read_b128 v[44:47], v22 offset:64""")
    wloads(spr[3])
    assert wn[0] == 8
    a(f"""s_mov_b64 exec, 1
    s_waitcnt lgkmcnt(0)
    v_max3_f32 v28, v40, v41, v42
    v_max_f32 v28, v28, v43
    v_pk_add_f32 v[44:45], v[44:45], v[46:47]
    v_add_f32 v29, v44, v45""")
    if dbg: stamp(14)
    pub_store(28, 19, sB)
    a("s_mov_b64 exec, -1")
    stamp(4)
    OA = KD
    for k in range(8):
        a(f"s_waitcnt vmcnt({7 - k + 9})")
        r = VD + k * 4
        for u in range(2):
            d = OA + 4 * u
            c = "0" if k == 0 else f"v[{d}:{d+3}]"
            a(f"v_mfma_f32_16x16x16_bf16 v[{d}:{d+3}], v[{XR[k]}:{XR[k]+1}], v[{r+2*u}:{r+2*u+1}], {c}")
    stamp(5)
    a(f"""ds_write_b128 v{vOa}, v[{OA}:{OA+3}]
    ds_write_b128 v{vOa}, v[{OA+4}:{OA+7}] offset:16
    s_waitcnt lgkmcnt(0)
    s_barrier
    s_mov_b32 exec_hi, 0""")
    for w in range(4):
        a(f"ds_read_b128 v[{48+4*w}:{48+4*w+3}], v1 offset:{2048*w}")
    sum4(48)
    a(f"v_bfi_b32 v51, s{sFF}, v{vT+3}, v51")
    pub_store(48, 19, sA)
    a("s_mov_b32 exec_hi, -1")
    stamp(6)
    a(f"""s_cmp_eq_u32 s{sROLE}, 1
    s_cbranch_scc1 L_frole
    s_cmp_eq_u32 s{sROLE}, 2
    s_cbranch_scc1 L_kdone""")

    GD = 32
    vGo, vMo = 20, 21
    a(f"""s_lshl_b32 s{sA}, s{sT3}, 14
    s_add_u32 s{sA}, s{sA}, {OP}
    s_lshl_b32 s{sB}, s{sW}, 7
    s_add_u32 s{sA}, s{sA}, s{sB}
    s_lshl_b32 s{sB}, s{sT3}, 9
    s_add_u32 s{sB}, s{sB}, {ML}
    v_lshrrev_b32 v6, 3, v0
    v_and_b32 v7, 3, v0
    v_lshl_add_u32 v{vMo}, v6, 2, v7
    v_lshlrev_b32 v{vMo}, 4, v{vMo}
    v_and_b32 v7, 7, v0
    v_lshlrev_b32 v{vGo}, 11, v6
    v_lshl_add_u32 v{vGo}, v7, 4, v{vGo}
    s_lshl4_add_u32 s{sT0}, s{sG}, s{sS}
    s_lshr_b32 s{sT1}, s{sT0}, 5
    s_bfe_u32 s{sT2}, s{sT0}, 0x10004
    s_lshl1_add_u32 s{sT2}, s{sS}, s{sT2}
    s_lshl_b32 s{sC}, s{sT1}, 5
    s_add_u32 s{sC}, s{sC}, s{sT2}
    s_lshl_b32 s{sC}, s{sC}, 3
    v_lshlrev_b32 v57, 1, v{vI}
    buffer_load_short_d16_hi v56, v57, s[{sX}:{sX+3}], s{sC} offen
    L_mpoll:
    buffer_load_dwordx4 v[52:55], v{vMo}, s[{sWS}:{sWS+3}], s{sB} offen sc1""")

    def oloads():
        for u in range(4):
            a(f"buffer_load_dwordx4 v[{GD+4*u}:{GD+4*u+3}], v{vGo}, s[{sWS}:{sWS+3}], s{sA} offen offset:{512*u} sc1")
    oloads()
    a(f"""s_waitcnt vmcnt(4)
    v_cmp_ne_u32 vcc, s{sTAG}, v55""")
    poll_tail("L_mpoll", "L_mgo")
    dpp("max_f32", 6, 52, 52, "quad_perm:[1,0,3,2]")
    dpp("max_f32", 6, 6, 6, "quad_perm:[2,3,0,1]")
    wave_red(6, sT0, op="max", steps=(8,))
    a(f"""v_subrev_f32 v52, s{sT0}, v52
    v_mul_f32 v52, s{sL2E}, v52
    v_exp_f32 v52, v52
    v_mul_f32 v6, v52, v53""")
    dpp("add_f32", 6, 6, 6, "quad_perm:[1,0,3,2]")
    dpp("add_f32", 6, 6, 6, "quad_perm:[2,3,0,1]")
    wave_red(6, sT0, steps=(8,))
    a(f"""v_rcp_f32 v6, s{sT0}
    v_mul_f32 v52, v52, v6
    s_lshl_b32 s{sC}, s{sW}, 10
    s_add_u32 s{sC}, s{sC}, {L_RED}
    v_lshl_add_u32 v22, v0, 4, s{sC}
    v_and_b32 v7, 1, v0
    v_lshlrev_b32 v7, 4, v7
    v_lshrrev_b32 v1, 1, v0
    v_add_u32 v7, v7, v1
    v_lshlrev_b32 v7, 4, v7
    s_branch L_ochk
    L_opoll:""")
    oloads()
    a(f"""L_ochk:
    s_waitcnt vmcnt(0)""")
    tagcheck(6, [GD + 4 * u + 3 for u in range(4)], [vT + 3] * 4)
    poll_tail("L_opoll", "L_ogo")
    stamp(7)
    for i in range(4):
        dpp("mul_f32", GD + i, 52, GD + i, "quad_perm:[0,0,0,0]")
    for u in range(1, 4):
        for i in range(4):
            dpp("fmac_f32", GD + i, 52, GD + 4 * u + i, f"quad_perm:[{u},{u},{u},{u}]")
    xreduce4(GD)
    dpp("add_f32", GD, GD, GD, "row_ror:8")
    a(f"v_cvt_pk_bf16_f32 v{GD}, v{GD}, v{GD}")
    AS, DD = 40, 48

    def gemv(src, n, wbase, bank, dreg, bc=lambda t: t):
        def sel(t):
            s = AS + 4 * (t & 1)
            for i in range(4):
                dpp("and_b32", s + i, src, vM + i, f"row_newbcast:{bc(t)}", bm=bank)
        sel(0)
        for t in range(n):
            if t < n - 1:
                sel(t + 1)
            s = AS + 4 * (t & 1)
            c = "0" if t == 0 else f"v[{dreg}:{dreg+3}]"
            a(f"v_mfma_f32_16x16x32_bf16 v[{dreg}:{dreg+3}], v[{s}:{s+3}], v[{wbase+4*t}:{wbase+4*t+3}], {c}")
    gemv(GD, 8, WD, "0xf", DD)
    a(f"""s_lshl_b32 s{sA}, s{sKC}, 5
    s_add_u32 s{sA}, s{sA}, s{sT3}
    s_lshl_b32 s{sA}, s{sA}, 9
    s_add_u32 s{sA}, s{sA}, {HP}
    s_lshl_b32 s{sB}, s{sG}, 5
    s_add_u32 s{sB}, s{sB}, s{sS}
    s_lshl_b32 s{sB}, s{sB}, 2
    s_add_u32 s{sB}, s{sB}, {FL1}
    ds_write_b128 v22, v[{DD}:{DD+3}]
    s_waitcnt lgkmcnt(0)
    s_barrier""")
    stamp(8)
    a(f"""s_cmp_lg_u32 s{sW}, 0
    s_cbranch_scc1 L_onot0
    s_mov_b32 exec_hi, 0""")
    for w in range(4):
        a(f"ds_read_b128 v[{32+4*w}:{32+4*w+3}], v7 offset:{L_RED+1024*w}")
    sum4(32)
    for j in range(4):
        a(f"v_bfi_b32 v{32+j}, s{sFF}, v{vT+j}, v{32+j}")
    a(f"buffer_store_dwordx4 v[32:35], v19, s[{sWS}:{sWS+3}], s{sA} offen sc1")
    if flags:
        a("s_mov_b32 exec_lo, 1")
        pub_store(30, 19, sB, n=1)
    stamp(9)
    a(f"""s_branch L_kdone
    L_onot0:
    s_cmp_lg_u32 s{sW}, 1
    s_cbranch_scc1 L_kdone""")

    a(f"""s_lshl4_add_u32 s{sT0}, s{sG}, s{sS}      ; G
    s_lshr_b32 s{sT1}, s{sT0}, 5
    s_bfe_u32 s{sT2}, s{sT0}, 0x10004
    s_lshl1_add_u32 s{sT2}, s{sS}, s{sT2}     ; n
    s_lshl_b32 s{sA}, s{sT1}, 5
    s_add_u32 s{sA}, s{sA}, s{sT2}
    s_lshl_b32 s{sC}, s{sA}, 3
    v_lshlrev_b32 v20, 1, v{vI}
    v_mov_b32 v21, v56
    s_lshl_b32 s{sA}, s{sT1}, 14
    s_lshl_b32 s{sB}, s{sT2}, 4
    s_add_u32 s{sA}, s{sA}, s{sB}
    s_add_u32 s{sA}, s{sA}, {HP}
    v_and_b32 v6, 31, v0
    v_lshlrev_b32 v6, 9, v6
    s_lshl_b32 s{sT2}, s{sT2}, 3
    s_lshl_b32 s{sB}, s{sG}, 7
    s_add_u32 s{sB}, s{sB}, {FL1}
    v_lshlrev_b32 v28, 2, v2""")
    for j in range(4):
        a(f"s_add_u32 s{sT3}, s{sT2}, {8*j}")
        a(f"v_mov_b32 v7, s{sT3}")
        a(f"v_alignbit_b32 v{40+j}, s{sTAG}, s{sTAG}, v7")
    flag_poll("L_rf1", 28, sB, 29)
    a(f"""L_hpoll:
    buffer_load_dwordx4 v[32:35], v6, s[{sWS}:{sWS+3}], s{sA} offen sc1
    s_waitcnt vmcnt(0)""")
    tagcheck(7, [32, 33, 34, 35], [40, 41, 42, 43])
    poll_tail("L_hpoll", "L_hgo")
    stamp(9)
    xreduce4(32)
    for k in (8, 4, 2, 1):
        dpp("add_f32", 32, 32, 32, f"row_ror:{k}")
    a(f"v_mul_f32 v32, 0.5, v32")
    round_bf16(32, "v32")
    a(f"""v_and_b32 v21, s{sHI}, v21
    v_add_f32 v21, v21, v32""")
    round_bf16(21, "v21")
    a(f"""s_lshl_b32 s{sA}, s{sT0}, 4
    s_add_u32 s{sA}, s{sA}, {FP}
    s_add_u32 s{sB}, s{sA}, {64*2048}
    v_lshlrev_b32 v6, 11, v0
    s_lshl_b32 s{sT2}, s{sT0}, 3
    s_lshl_b32 s{sD}, s{sG}, 8
    s_add_u32 s{sD}, s{sD}, {FL2}
    s_cmp_lt_u32 s{sG}, 4
    s_cselect_b32 s{sT1}, 63, 47
    v_min_u32 v28, s{sT1}, v0
    v_lshlrev_b32 v28, 2, v28""")
    for j in range(4):
        a(f"s_add_u32 s{sT3}, s{sT2}, {8*j}")
        a(f"v_mov_b32 v7, s{sT3}")
        a(f"v_alignbit_b32 v{40+j}, s{sTAG}, s{sTAG}, v7")
    for j in range(4):
        a(f"v_and_b32 v{36+j}, s{sFF}, v{40+j}")
    flag_poll("L_rf2", 28, sD, 29)
    stamp(12)
    a(f"""L_fpoll:
    buffer_load_dwordx4 v[32:35], v6, s[{sWS}:{sWS+3}], s{sA} offen sc1
    s_mov_b32 exec_hi, 0xffff
    buffer_load_dwordx4 v[36:39], v6, s[{sWS}:{sWS+3}], s{sB} offen sc1
    s_mov_b32 exec_hi, -1
    s_waitcnt vmcnt(0)""")
    tagcheck(7, list(range(32, 40)), [40, 41, 42, 43] * 2)
    poll_tail("L_fpoll", "L_fgo")
    stamp(10)
    a(f"""v_pk_add_f32 v[32:33], v[32:33], v[36:37]
    v_pk_add_f32 v[34:35], v[34:35], v[38:39]""")
    xreduce4(32)
    for k in (8, 4, 2, 1):
        dpp("add_f32", 32, 32, 32, f"row_ror:{k}")
    round_bf16(32, "v32")
    a(f"""v_add_f32 v32, v21, v32
    v_cvt_pk_bf16_f32 v32, v32, v32
    s_mov_b32 exec_lo, 0x00010001
    s_mov_b32 exec_hi, 0x00010001
    buffer_store_short v32, v20, s[{sOUT}:{sOUT+3}], s{sC} offen
    s_cmp_lg_u32 s2, 0
    s_cbranch_scc1 L_noep
    s_mov_b64 exec, 1
    buffer_store_dword v30, v19, s[{sWS}:{sWS+3}], 0 offen sc1
    L_noep:""")
    stamp(11)
    if probe is not None:
        a(f"""s_cmp_lg_u32 s2, 0
        s_cbranch_scc1 L_kdone
        s_waitcnt lgkmcnt(0)
        s_sub_u32 s{sA}, s{sSTAMP0+2*probe}, s{sSTAMP0}
        s_min_u32 s{sA}, s{sA}, 10000
        L_probe:
        s_memrealtime s[{sC}:{sD}]
        s_waitcnt lgkmcnt(0)
        s_sub_u32 s{sB}, s{sC}, s{sSTAMP0+22}
        s_cmp_lt_u32 s{sB}, s{sA}
        s_cbranch_scc1 L_probe""")
    a("s_branch L_kdone")

    a("L_frole:")
    if not fearly:
        a("v_mov_b32 v7, 0")
        a(WAF)
        wn[0] = 0
        wloads(8)
    a(f"""    s_lshl_b32 s{sC}, s{sT2}, 14
    s_lshl_b32 s{sB}, s{sW}, 8
    s_add_u32 s{sC}, s{sC}, s{sB}
    s_add_u32 s{pW2}, s{pW2}, s{sC}
    s_addc_u32 s{pW2+1}, s{pW2+1}, 0
    v_add_u32 v6, 0x1000, v{vWo}
    v_add_u32 v20, 0x3000, v{vWo}
    global_load_dwordx4 v[{W2D}:{W2D+3}], v6, s[{pW2}:{pW2+1}] offset:-4096 nt
    global_load_dwordx4 v[{W2D+4}:{W2D+7}], v6, s[{pW2}:{pW2+1}] nt
    global_load_dwordx4 v[{W2D+8}:{W2D+11}], v20, s[{pW2}:{pW2+1}] offset:-4096 nt
    global_load_dwordx4 v[{W2D+12}:{W2D+15}], v20, s[{pW2}:{pW2+1}] nt
    s_lshl_b32 s{sD}, s{sKC}, 8
    s_lshl_b32 s{sB}, s{sW}, 6
    s_add_u32 s{sD}, s{sD}, s{sB}
    v_and_b32 v7, 7, v0
    v_lshl_add_u32 v6, v7, 2, v{vI}
    v_lshlrev_b32 v6, 1, v6
    buffer_load_short_d16_hi v22, v6, s[{sX}:{sX+3}], s{sD} offen
    v_mov_b32 v23, 0x3f803f80
    v_and_b32 v7, 1, v2
    v_lshlrev_b32 v7, 4, v7
    v_mov_b32 v6, 0xffff
    v_lshlrev_b32 v6, v7, v6
    v_and_b32 v23, v23, v6
    v_bfe_u32 v7, v2, 1, 2""")
    for i in range(4):
        a(f"v_cmp_eq_u32 vcc, {i}, v7")
        a(f"v_cndmask_b32 v{AS+i}, 0, v23, vcc")
        a(f"v_mov_b32 v{AS+4+i}, v{AS+i}")
    a(f"""s_lshl_b32 s{sA}, s{sKC}, 14
    s_lshl_b32 s{sB}, s{sW}, 7
    s_add_u32 s{sA}, s{sA}, s{sB}
    s_add_u32 s{sA}, s{sA}, {HP}
    v_lshrrev_b32 v6, 3, v0
    v_and_b32 v7, 7, v0
    v_lshlrev_b32 v20, 11, v6
    v_lshl_add_u32 v20, v7, 4, v20
    s_lshl2_add_u32 s{sB}, s{sT2}, s{sW}
    s_lshl_b32 s{sB}, s{sB}, 4
    s_add_u32 s{sB}, s{sB}, {ST}
    s_lshl_b32 s{sC}, s{sW}, 10
    s_add_u32 s{sC}, s{sC}, {L_RED}
    v_lshl_add_u32 v1, v0, 4, s{sC}
    v_bfe_u32 v4, v0, 1, 1
    v_lshlrev_b32 v4, 3, v4
    v_lshl_add_u32 v4, v3, 1, v4
    v_bfe_u32 v5, v0, 3, 1
    v_add_u32 v4, v4, v5
    v_bfe_u32 v5, v0, 2, 1
    v_lshl_add_u32 v4, v5, 4, v4
    v_and_b32 v5, 1, v0
    v_lshl_add_u32 v4, v5, 5, v4
    v_lshlrev_b32 v4, 4, v4
    v_lshlrev_b32 v5, 10, v3
    v_lshl_add_u32 v5, v2, 4, v5
    v_lshlrev_b32 v21, 4, v2
    s_lshl_b32 s{sC}, s{sG}, 7
    s_add_u32 s{sC}, s{sC}, {FL1}
    v_lshlrev_b32 v28, 2, v2""")
    flag_poll("L_ff1", 28, sC, 29)
    stamp(7)
    HD = 52
    a("L_gpoll:")
    for u in range(4):
        a(f"buffer_load_dwordx4 v[{HD+4*u}:{HD+4*u+3}], v20, s[{sWS}:{sWS+3}], s{sA} offen offset:{512*u} sc1")
    a(f"s_waitcnt vmcnt(0)")
    tagcheck(6, [HD + 4 * u + 3 for u in range(4)], [vT + 3] * 4)
    poll_tail("L_gpoll", "L_ggo")
    stamp(8)
    a(f"""v_pk_add_f32 v[{HD}:{HD+1}], v[{HD}:{HD+1}], v[{HD+4}:{HD+5}]
    v_pk_add_f32 v[{HD+2}:{HD+3}], v[{HD+2}:{HD+3}], v[{HD+6}:{HD+7}]
    v_pk_add_f32 v[{HD+8}:{HD+9}], v[{HD+8}:{HD+9}], v[{HD+12}:{HD+13}]
    v_pk_add_f32 v[{HD+10}:{HD+11}], v[{HD+10}:{HD+11}], v[{HD+14}:{HD+15}]
    v_pk_add_f32 v[{HD}:{HD+1}], v[{HD}:{HD+1}], v[{HD+8}:{HD+9}]
    v_pk_add_f32 v[{HD+2}:{HD+3}], v[{HD+2}:{HD+3}], v[{HD+10}:{HD+11}]
    v_and_b32 v22, s{sHI}, v22""")
    xreduce4(HD)
    dpp("add_f32", HD, HD, HD, "row_ror:8")
    round_bf16(HD, f"v{HD}")
    a(f"""v_add_f32 v{HD}, v22, v{HD}
    v_cvt_pk_bf16_f32 v{HD}, v{HD}, v{HD}
    v_and_b32 v22, s{sHI}, v{HD}""")
    dpp("add_f32", 6, 22, 22, "row_ror:4")
    wave_red(6, sT0, steps=(2, 1))
    a(f"""v_mov_b32 v28, 0x3d000000
    v_mul_f32 v28, s{sT0}, v28
    v_sub_f32 v6, v22, v28
    v_mul_f32 v6, v6, v6""")
    wave_red(6, sT0, steps=(4, 2, 1))
    a(f"""v_mov_b32 v29, s{sT0}
    s_mov_b64 exec, 1""")
    pub_store(28, 19, sB)
    a("s_mov_b64 exec, -1")
    stamp(9)
    gemv(HD, 8, WD, "0x3", DD)
    a(f"""s_lshl_b32 s{sA}, s{sCB}, 12
    s_add_u32 s{sA}, s{sA}, {GP}
    s_lshl_b32 s{sB}, s{sKC}, 8
    s_add_u32 s{sB}, s{sB}, s{sA}
    s_lshl_b32 s{sC}, s{sKC}, 10
    s_add_u32 s{sA}, s{sA}, s{sC}
    s_lshl_b32 s{sC}, s{sCB}, 8
    s_add_u32 s{sC}, s{sC}, {ST}
    ds_write_b128 v1, v[{DD}:{DD+3}]
    s_waitcnt lgkmcnt(0)
    s_barrier
    s_cmp_lg_u32 s{sW}, 0
    s_cbranch_scc1 L_spoll""")
    for w in range(4):
        a(f"ds_read_b128 v[{HD+4*w}:{HD+4*w+3}], v4 offset:{L_RED+1024*w}")
    sum4(HD)
    a(f"v_bfi_b32 v{HD+3}, s{sFF}, v{vT+3}, v{HD+3}")
    pub_store(HD, 5, sB)
    a(f"""L_spoll:
    buffer_load_dwordx4 v[36:39], v21, s[{sWS}:{sWS+3}], s{sC} offen sc1
    s_waitcnt vmcnt(0)
    v_cmp_ne_u32 vcc, s{sTAG}, v39""")
    poll_tail("L_spoll", "L_sgo")
    stamp(10)
    dpp("add_f32", 6, 36, 36, "row_ror:8")
    for k in (4, 2, 1):
        dpp("add_f32", 6, 6, 6, f"row_ror:{k}")
    a(f"""v_mul_f32 v6, 0x3d800000, v6
    v_sub_f32 v36, v36, v6
    v_mul_f32 v36, v36, v36
    v_fmac_f32 v37, 0x42000000, v36""")
    for k in (8, 4, 2, 1):
        dpp("add_f32", 37, 37, 37, f"row_ror:{k}")
    round_bf16(6, "v6")
    a(f"""v_mul_f32 v37, 0x3b000000, v37
    v_sub_f32 v6, 0, v6""")
    round_bf16(37, "v37")
    a(f"v_add_f32 v37, {hex(EPS)}, v37")
    round_bf16(37, "v37")
    a(f"v_sqrt_f32 v37, v37")
    round_bf16(37, "v37")
    a(f"""v_rcp_f32 v37, v37
    s_sub_u32 s{sB}, s{sS}, 16
    s_lshl2_add_u32 s{sB}, s{sB}, s{sW}
    s_lshl_b32 s{sC}, s{sG}, 6
    s_add_u32 s{sB}, s{sB}, s{sC}
    s_lshl_b32 s{sB}, s{sB}, 2
    s_add_u32 s{sB}, s{sB}, {FL2}
    s_lshl_b32 s{sD}, s{sT2}, 11
    s_lshl_b32 s{sC}, s{sW}, 9
    s_add_u32 s{sD}, s{sD}, s{sC}
    s_add_u32 s{sD}, s{sD}, {FP}
    L_upoll:
    buffer_load_dwordx4 v[32:35], v19, s[{sWS}:{sWS+3}], s{sA} offen sc1
    s_waitcnt vmcnt(0)""")
    tagcheck(7, [35], [vT + 3])
    poll_tail("L_upoll", "L_ugo")
    stamp(11)
    xreduce4(32)
    dpp("mov_b32", 33, 32, None, "quad_perm:[0,0,2,2]")
    dpp("fmac_f32", 33, 32, 6, "quad_perm:[1,1,3,3]")
    a(f"v_mul_f32 v33, v33, v37")
    round_bf16(33, "v33")
    a(f"""v_mul_f32 v34, {hex(LOG2E | 0x80000000)}, v33
    v_exp_f32 v34, v34
    v_add_f32 v34, 1.0, v34
    v_rcp_f32 v34, v34
    v_mul_f32 v34, v33, v34""")
    round_bf16(34, "v34")
    dpp("mul_f32", 34, 33, 34, "quad_perm:[2,2,2,2]")
    a(f"v_cvt_pk_bf16_f32 v34, v34, v34")
    gemv(34, 4, W2D, "0xf", DD, bc=lambda t: 4 * t)
    a(f"s_mov_b32 exec_hi, 0")
    for j in range(4):
        a(f"v_bfi_b32 v{DD+j}, s{sFF}, v{vT+j}, v{DD+j}")
    a(f"buffer_store_dwordx4 v[{DD}:{DD+3}], v19, s[{sWS}:{sWS+3}], s{sD} offen sc1")
    if flags:
        a("s_mov_b32 exec_lo, 1")
        pub_store(30, 19, sB, n=1)
    stamp(12)
    a("L_kdone:")
    flush_stamps()
    a("s_endpgm")
    for s_ in slow:
        a(s_)
    a("L_end:")
    body = pad(a.text(), verbose=False)
    return single_file(body, 256, 320, LDS_BYTES, 168, sgpr=100)


if __name__ == "__main__":
    import json
    variants = json.loads(sys.argv[1]) if len(sys.argv) > 1 else {"k4": {}}
    for n, kw in variants.items():
        open(n + ".s", "w").write(gen(**kw))
        open(n + "_st.s", "w").write(gen(stamps=True, **kw))
```

```python
import sys
from gl import *
from hz import pad

EPOCH = 0
XF1 = 0x7c000
XF2 = 0x800
FL1 = 0x400
FL2 = 0x800
QP = 0x1000
ML = 0x11000
ST = 0x15000
GP = 0x120000
HP = 0x34000
FP = 0x44000
QB = 0x100000
OP = 0x80000
STAMPS = 0x200000
L_Q = 0
L_FLAG = 1024
L_ML = 1056
L_DUMMY = 1280
L_OW = 2304
L_RED = L_OW + 8192
L_STQ = L_RED + 4096
LDS_BYTES = L_RED + 4096 + 64
SPIN_LIMIT = 200000
LOG2E = 0x3fb8aa3b
SCALE = 0x3db504f3
EPS = 0x3727c5ac

sK, sV, sWQ, sWS, sX, sOUT = 8, 12, 16, 36, 40, 44
pWO, pW1, pW3, pW2 = 20, 24, 26, 28
sRHO, sWOF = 34, 35
sXO, sHA = 4, 5
sSTR = 32
sG, sS, sW = 48, 49, 50
sTAG, sEP = 51, 52
sT0, sT1, sT2, sT3 = 53, 54, 55, 56
sCNT = 57
sFF, sHI = 58, 59
sROLE, sCOL = 60, 61
sA, sB, sC, sD = 62, 63, 64, 65
sKC, sCB = 66, 67
sXCC = 68
sL2E = 69
sSTAMP0 = 70


def gen(stamps=False, probe=None, win=8, win0=None, kalign=8, flags=True, qdelay=12, ack=False, tlb=False, dbg=False, b0pos=2, pre=0, qdual=True, na=4, qst='', qwarm=True, lst='', fearly=False, p1=2, n1=2, afirst=True, wpol='sc1', n2=0, wpre=0, wwait=True, tv=False, rho=True, wodiag=False, xfl=True, rdelay=6, fdelay=0, xpos=7,
        l2warm=True, spr=(3, 2, 2, 1), lpath=True):
    a = Asm()
    slow = []
    if win0 is None:
        win0 = win
    diag = stamps or probe is not None

    def stamp(k):
        if stamps or (probe is not None and k in (0, probe)):
            a(f"s_memrealtime s[{sSTAMP0+2*k}:{sSTAMP0+2*k+1}]")

    def flush_stamps():
        if not stamps:
            return
        a(f"""s_waitcnt lgkmcnt(0)
        s_mov_b64 exec, 1
        s_lshl_b32 s{sA}, s2, 3
        s_add_u32 s{sA}, s{sA}, s3
        s_lshl_b32 s{sA}, s{sA}, 6
        s_add_u32 s{sA}, s{sA}, {STAMPS}
        v_mov_b32 v1, 0""")
        for k in range(0, 16, 4):
            for j in range(4):
                a(f"v_mov_b32 v{4+j}, s{sSTAMP0+2*(k+j) if k + j < 15 else sCNT}")
            a(f"buffer_store_dwordx4 v[4:7], v1, s[{sWS}:{sWS+3}], s{sA} offen offset:{k*4}")
        a(f"""s_cmp_lg_u32 s3, 4
        s_cbranch_scc1 L_nq
        s_sub_u32 s{sA}, s{sA}, 256
        v_mov_b32 v2, {L_STQ}""")
        for k in range(4):
            a(f"ds_read_b128 v[4:7], v2 offset:{16*k}\ns_waitcnt lgkmcnt(0)\nbuffer_store_dwordx4 v[4:7], v1, s[{sWS}:{sWS+3}], s{sA} offen offset:{k*16}")
        a("L_nq:\ns_waitcnt vmcnt(0)")

    def epoch_to_tag():
        a(f"""s_and_b32 s{sT0}, s{sEP}, 0xff
        s_add_u32 s{sTAG}, s{sT0}, 1
        s_and_b32 s{sTAG}, s{sTAG}, 0xff""")
        for i in (1, 2, 3):
            a(f"""s_bfe_u32 s{sT1}, s{sEP}, {hex(0x80000 | (8*i))}
            s_add_u32 s{sT1}, s{sT1}, 1
            s_and_b32 s{sT1}, s{sT1}, 0xff
            s_cmp_eq_u32 s{sT1}, s{sT0}
            s_addc_u32 s{sT1}, s{sT1}, 0
            s_and_b32 s{sT1}, s{sT1}, 0xff
            s_lshl_b32 s{sT1}, s{sT1}, {8*i}
            s_or_b32 s{sTAG}, s{sTAG}, s{sT1}""")

    def round_bf16(dst, src):
        a(f"v_cvt_pk_bf16_f32 v{dst}, {src}, {src}")
        a(f"v_and_b32 v{dst}, s{sHI}, v{dst}")

    def dpp(op, d, s0, s1, ctl, rm="0xf", bm="0xf"):
        a(f"v_{op}_dpp v{d}, v{s0}{'' if s1 is None else ', v%d' % s1} {ctl} row_mask:{rm} bank_mask:{bm}")

    def wave_red(v, sdst, op="add", steps=(8, 4, 2, 1)):
        for k in steps:
            dpp(op + "_f32", v, v, v, f"row_ror:{k}")
        dpp(op + "_f32", v, v, v, "row_bcast:15", rm="0xa")
        dpp(op + "_f32", v, v, v, "row_bcast:31", rm="0xc")
        a(f"v_readlane_b32 s{sdst}, v{v}, 63")

    def poll_tail(lab, go):
        a(f"""s_cbranch_vccz {go}
        s_add_u32 s{sCNT}, s{sCNT}, 1
        s_cmp_lt_u32 s{sCNT}, {SPIN_LIMIT}
        s_cbranch_scc1 {lab}
        {go}:""")

    def xreduce4(r0):
        a(f"""v_permlane32_swap_b32 v{r0}, v{r0+1}
        v_permlane32_swap_b32 v{r0+2}, v{r0+3}
        v_add_f32 v{r0}, v{r0}, v{r0+1}
        v_add_f32 v{r0+2}, v{r0+2}, v{r0+3}
        v_permlane16_swap_b32 v{r0}, v{r0+2}
        v_add_f32 v{r0}, v{r0}, v{r0+2}""")

    def pub_store(data, voff, soff, n=4):
        ins = f"buffer_store_dwordx4 v[{data}:{data+3}]" if n == 4 else f"buffer_store_dword v{data}"
        ins += f", v{voff}, s[{sWS}:{sWS+3}], s{soff} offen"
        if not lpath:
            a(ins + " sc1")
            return
        l1 = a.label("L_wt"); l2 = a.label("L_wb")
        a(f"""s_cmp_eq_u32 s{sCOL}, 1
        s_cbranch_scc0 {l1}
        {ins} {lst}
        {l2}:""")
        slow.append(f"{l1}:\n{ins} sc1\ns_branch {l2}")

    def build_masks(vM):
        a(f"""v_and_b32 v7, 1, v2
        v_lshlrev_b32 v7, 4, v7
        v_mov_b32 v13, 0xffff
        v_lshlrev_b32 v13, v7, v13
        v_bfe_u32 v7, v2, 1, 2""")
        for i in range(4):
            a(f"v_cmp_eq_u32 vcc, {i}, v7")
            a(f"v_cndmask_b32 v{vM+i}, 0, v13, vcc")

    def flag_poll(name, voff, soff, tmp):
        if not flags:
            return
        a(f"""{name}:
        buffer_load_dword v{tmp}, v{voff}, s[{sWS}:{sWS+3}], s{soff} offen sc1
        s_waitcnt vmcnt(0)
        v_cmp_ne_u32 vcc, s{sTAG}, v{tmp}""")
        poll_tail(name, name + "_go")

    def sum4(r):
        a(f"""s_waitcnt lgkmcnt(2)
        v_pk_add_f32 v[{r}:{r+1}], v[{r}:{r+1}], v[{r+4}:{r+5}]
        v_pk_add_f32 v[{r+2}:{r+3}], v[{r+2}:{r+3}], v[{r+6}:{r+7}]
        s_waitcnt lgkmcnt(0)
        v_pk_add_f32 v[{r+8}:{r+9}], v[{r+8}:{r+9}], v[{r+12}:{r+13}]
        v_pk_add_f32 v[{r+10}:{r+11}], v[{r+10}:{r+11}], v[{r+14}:{r+15}]
        v_pk_add_f32 v[{r}:{r+1}], v[{r}:{r+1}], v[{r+8}:{r+9}]
        v_pk_add_f32 v[{r+2}:{r+3}], v[{r+2}:{r+3}], v[{r+10}:{r+11}]""")

    def tagcheck(acc, regs, tags, mask=True):
        a(f"v_xor_b32 v{acc}, v{regs[0]}, v{tags[0]}")
        for r, t in zip(regs[1:], tags[1:]):
            a(f"v_bitop3_b32 v{acc}, v{acc}, v{r}, v{t} bitop3:0xf6")
        a(f"""v_and_b32 v{acc}, s{sFF}, v{acc}
        v_cmp_ne_u32 vcc, 0, v{acc}""")

    vXS, vXL, vWo = 4, 5, 6
    X, XS, WQ = 16, 20, 64
    stamp(0)
    a(f"""s_load_dwordx2 s[{sX}:{sX+1}], s[0:1], 0
    s_load_dwordx2 s[{sWQ}:{sWQ+1}], s[0:1], 24
    s_load_dwordx4 s[{sK}:{sK+3}], s[0:1], 8
    s_load_dwordx2 s[{sWS}:{sWS+1}], s[0:1], 88
    v_readfirstlane_b32 s3, v0
    s_cmpk_ge_u32 s2, 256
    s_cbranch_scc1 L_end
    s_lshr_b32 s3, s3, 6
    s_cbranch_scc0 L_q
    s_cmp_lg_u32 s3, 4
    s_cbranch_scc1 L_kreg
    s_cmp_ge_u32 s2, 16
    s_cbranch_scc1 L_100
    s_getpc_b64 s[{sC}:{sD}]
    L_pc:
    v_lshlrev_b32 v7, 7, v0
    v_add_u32 v7, 0xffff8000, v7
    global_load_dword v140, v7, s[{sC}:{sD}]
    v_add_u32 v7, 0x2000, v7
    v_min_u32 v7, L_end-L_pc, v7
    global_load_dword v140, v7, s[{sC}:{sD}]
    s_branch L_100
    L_q:
    s_mov_b32 s{sX+3}, 0x20000
    s_movk_i32 s{sX+2}, 1024
    s_mov_b32 s{sWQ+3}, s{sX+3}
    s_lshl_b32 s{sWQ+2}, 1, 22
    s_bfe_u32 s{sKC}, s2, 0x20003
    s_lshr_b32 s{sCB}, s2, 5
    s_and_b32 s{sG}, s2, 7
    v_lshlrev_b32 v{vXS}, 4, v0
    v_lshrrev_b32 v{vXL}, 3, v0
    v_lshlrev_b32 v{vWo}, 17, v{vXL}
    v_and_b32 v7, 7, v0
    v_lshl_add_u32 v{vWo}, v7, 4, v{vWo}
    v_lshlrev_b32 v{vXL}, 5, v{vXL}
    s_lshl_b32 s{sA}, s{sKC}, 8
    s_lshl_b32 s{sB}, s{sKC}, 10
    s_add_u32 s{sB}, s{sB}, s{sG}
    s_lshl3_add_u32 s{sB}, s{sB}, s{sCB}
    s_lshl_b32 s{sB}, s{sB}, 7
    s_waitcnt lgkmcnt(0)
    buffer_load_dwordx4 v[{X}:{X+3}], v{vXS}, s[{sX}:{sX+3}], 0 offen
    buffer_load_dwordx4 v[{XS}:{XS+3}], v{vXL}, s[{sX}:{sX+3}], s{sA} offen
    buffer_load_dwordx4 v[{XS+4}:{XS+7}], v{vXL}, s[{sX}:{sX+3}], s{sA} offen offset:16""")
    nfirst = 0 if diag else 1
    for t in range(16):
        if t == nfirst:
            a(f"""s_branch L_q2
            .p2align 8
            L_100:
            s_branch L_kreg
            L_q2:
            s_setprio 3
            s_movk_i32 s{sD}, 0x2000""")
        if t > 0:
            a(f"s_add_u32 s{sB}, s{sB}, s{sD}")
        a(f"buffer_load_dwordx4 v[{WQ+4*t}:{WQ+4*t+3}], v{vWo}, s[{sWQ}:{sWQ+3}], s{sB} offen nt")
    if b0pos == 0: a("s_barrier")

    vM, vT3 = 8, 12
    U, vA, D, PP = 28, 36, 44, 48
    stamp(1)
    a(f"""s_load_dword s{sEP}, s[{sWS}:{sWS+1}], {EPOCH}
    s_mov_b32 s{sWS+3}, s{sX+3}
    s_lshl_b32 s{sWS+2}, 1, 28
    s_lshr_b32 s{sS}, s2, 3
    v_and_b32 v2, 15, v0
    v_lshrrev_b32 v3, 4, v0
    s_mov_b32 s{sFF}, 0xff
    s_mov_b32 s{sHI}, 0xffff0000
    s_mov_b32 s{sCNT}, 0""")
    build_masks(vM)
    a(f"""s_getreg_b32 s{sXCC}, hwreg(HW_REG_XCC_ID)
    s_and_b32 s{sXCC}, s{sXCC}, 0xff
    v_and_b32 v7, 7, v0
    v_lshl_add_u32 v7, v3, 3, v7
    v_lshlrev_b32 v7, 4, v7
    s_lshl_b32 s{sA}, s{sG}, 13
    s_add_u32 s{sA}, s{sA}, {QP}
    s_lshl_b32 s{sB}, s{sKC}, 11
    s_add_u32 s{sB}, s{sB}, s{sA}
    s_lshl_b32 s{sC}, s{sCB}, 8
    s_add_u32 s{sB}, s{sB}, s{sC}
    s_add_u32 s{sC}, s{sA}, 4096
    v_mov_b32 v13, s{sXCC}""")
    if qdual and qwarm:
        a(f"""v_lshlrev_b32 v14, 7, v0
        s_mov_b64 exec, 3
        buffer_load_dword v15, v14, s[{sWS}:{sWS+3}], s{sB} offen sc1
        s_mov_b64 exec, -1""")
    nx = 1 if (qdual and qwarm) else 0
    a(f"s_waitcnt vmcnt({18+nx})")
    if b0pos == 1: a("s_barrier")
    stamp(2)
    for i in range(4):
        a(f"v_lshlrev_b32 v{U+2*i}, 16, v{X+i}")
        a(f"v_and_b32 v{U+2*i+1}, s{sHI}, v{X+i}")
    a(f"""v_pk_add_f32 v[{vA}:{vA+1}], v[{U}:{U+1}], v[{U+2}:{U+3}]
    v_pk_add_f32 v[{vA+2}:{vA+3}], v[{U+4}:{U+5}], v[{U+6}:{U+7}]
    v_pk_add_f32 v[{vA}:{vA+1}], v[{vA}:{vA+1}], v[{vA+2}:{vA+3}]
    v_add_f32 v{vA}, v{vA}, v{vA+1}""")
    wave_red(vA, sT0)
    a(f"""v_mov_b32 v14, 0x3b000000
    v_mul_f32 v14, s{sT0}, v14""")
    for i in range(4):
        a(f"v_pk_add_f32 v[{U+2*i}:{U+2*i+1}], v[{U+2*i}:{U+2*i+1}], v[14:15] op_sel_hi:[1,0] neg_lo:[0,1] neg_hi:[0,1]")
    a(f"v_pk_mul_f32 v[{vA}:{vA+1}], v[{U}:{U+1}], v[{U}:{U+1}]")
    for i in range(1, 4):
        a(f"v_pk_fma_f32 v[{vA}:{vA+1}], v[{U+2*i}:{U+2*i+1}], v[{U+2*i}:{U+2*i+1}], v[{vA}:{vA+1}]")
    a(f"v_add_f32 v{vA}, v{vA}, v{vA+1}")
    wave_red(vA, sT0)
    round_bf16(14, "v14")
    a(f"""v_mov_b32 v40, 0x3b000000
    v_mul_f32 v40, s{sT0}, v40""")
    round_bf16(40, "v40")
    a(f"v_add_f32 v40, {hex(EPS)}, v40")
    round_bf16(40, "v40")
    a(f"v_sqrt_f32 v40, v40")
    round_bf16(40, "v40")
    a(f"v_rcp_f32 v40, v40")
    a(f"s_waitcnt vmcnt({16+nx})")
    for j in range(8):
        u = U + 2 * (j % 4)
        a(f"""v_lshlrev_b32 v{u}, 16, v{XS+j}
        v_and_b32 v{u+1}, s{sHI}, v{XS+j}
        v_pk_add_f32 v[{u}:{u+1}], v[{u}:{u+1}], v[14:15] op_sel_hi:[1,0] neg_lo:[0,1] neg_hi:[0,1]
        v_cvt_pk_bf16_f32 v{u+1}, v{u}, v{u+1}
        v_lshlrev_b32 v{u}, 16, v{u+1}
        v_and_b32 v{u+1}, s{sHI}, v{u+1}
        v_pk_mul_f32 v[{u}:{u+1}], v[{u}:{u+1}], v[40:41] op_sel_hi:[1,0]
        v_cvt_pk_bf16_f32 v{PP+2*j}, v{u}, v{u}
        v_cvt_pk_bf16_f32 v{PP+2*j+1}, v{u+1}, v{u+1}""")
    if b0pos == 2: a("s_barrier")
    stamp(3)
    a(f"s_waitcnt lgkmcnt(0)")
    epoch_to_tag()
    a(f"""v_lshlrev_b32 v14, 3, v0
    v_add_u32 v14, 24, v14
    v_alignbit_b32 v{vT3}, s{sTAG}, s{sTAG}, v14""")
    stamp(8)

    def selA(t):
        s = vA + 4 * (t & 1)
        for i in range(4):
            a(f"v_and_b32 v{s+i}, v{PP+t}, v{vM+i}")
    selA(0)
    for t in range(16):
        if t < 15:
            selA(t + 1)
        a(f"s_waitcnt vmcnt({15-t+nx})")
        if b0pos == 3 + t: a("s_barrier")
        s = vA + 4 * (t & 1)
        c = "0" if t == 0 else f"v[{D}:{D+3}]"
        a(f"v_mfma_f32_16x16x32_bf16 v[{D}:{D+3}], v[{s}:{s+3}], v[{WQ+4*t}:{WQ+4*t+3}], {c}")
    for i in range(4):
        a(f"v_mov_b32 v{U+i}, v{D+i}")
    for i in range(4):
        a(f"v_permlane32_swap_b32 v{D+i}, v{U+i}")
    for i in range(4):
        dpp("add_f32", D + i, U + i, D + i, "row_ror:8")
    a(f"""v_bfi_b32 v{D+2}, s{sFF}, v13, v{D+2}
    v_bfi_b32 v{D+3}, s{sFF}, v{vT3}, v{D+3}
    s_mov_b64 exec, 0x00ff00ff
    """)
    if qdual:
        a(f"""buffer_store_dwordx4 v[{D}:{D+3}], v7, s[{sWS}:{sWS+3}], s{sB} offen {qst}
        s_add_u32 s{sB}, s{sB}, {QB - QP}""")
    a(f"""buffer_store_dwordx4 v[{D}:{D+3}], v7, s[{sWS}:{sWS+3}], s{sB} offen sc1
    s_mov_b64 exec, -1""")
    if p1: a("s_barrier")
    stamp(4)
    a(f"""v_and_b32 v14, 8, v0
    v_add_u32 v7, v7, v14""")
    if l2warm:
        a(f"""s_lshl_b32 s{sT0}, s{sG}, 16
        s_lshl_b32 s{sT1}, s{sS}, 11
        s_add_u32 s{sT0}, s{sT0}, s{sT1}
        s_add_u32 s{sT0}, s{sT0}, {OP}
        v_lshlrev_b32 v15, 7, v0
        v_add_u32 v14, s{sT0}, v15
        s_lshr_b32 s{sT0}, s{sS}, 3
        s_lshl3_add_u32 s{sT0}, s{sT0}, s{sG}
        s_min_u32 s{sT0}, s{sT0}, 27
        s_and_b32 s{sT2}, s{sS}, 7
        s_lshl3_add_u32 s{sT1}, s{sT0}, s{sT2}
        s_lshl_b32 s{sT1}, s{sT1}, 11
        s_add_u32 s{sT1}, s{sT1}, {GP - 16*128}
        v_add_u32 v15, s{sT1}, v15
        v_cmp_lt_u32 vcc, 15, v0
        v_cndmask_b32 v14, v14, v15, vcc
        s_and_b32 s{sT1}, s{sS}, 15
        s_lshl4_add_u32 s{sT1}, s{sG}, s{sT1}
        s_lshl_b32 s{sT1}, s{sT1}, 7
        s_add_u32 s{sT1}, s{sT1}, {ML}
        v_writelane_b32 v14, s{sT1}, 32
        s_and_b32 s{sT2}, s{sS}, 1
        s_lshl1_add_u32 s{sT1}, s{sT0}, s{sT2}
        s_lshl_b32 s{sT1}, s{sT1}, 7
        s_add_u32 s{sT1}, s{sT1}, {ST}
        v_writelane_b32 v14, s{sT1}, 33
        s_mov_b32 exec_hi, 3
        buffer_load_dword v15, v14, s[{sWS}:{sWS+3}], 0 offen {wpol}
        s_mov_b32 exec_hi, -1""")
    if ack:
        a("s_waitcnt vmcnt(0)")
    if qdelay:
        a(f"s_sleep {qdelay}")
    if qdual and not afirst:
        a(f"""s_add_u32 s{sA}, s{sA}, {QB - QP}
        s_add_u32 s{sC}, s{sC}, {QB - QP}""")
    stamp(7)
    G = WQ

    def qloads():
        for kc in range(4):
            for h in range(2):
                o = kc * 2048 + h * 1024
                r = G + 4 * (kc * 2 + h)
                a(f"buffer_load_dwordx4 v[{r}:{r+3}], v{vXS}, s[{sWS}:{sWS+3}], s{sA if o < 4096 else sC} offen offset:{o % 4096} sc1")
    if n2:
        qloads()
        a("s_barrier\ns_branch L_qchk")
    a("L_qpoll:")
    qloads()
    a("L_qchk:\ns_waitcnt vmcnt(0)")
    tagcheck(14, [G + 4 * k + 3 for k in range(8)], [vT3] * 8)
    if qdual:
        a(f"""s_cbranch_vccz L_qgo
        s_add_u32 s{sCNT}, s{sCNT}, 1
        s_cmp_eq_u32 s{sCNT}, 1
        s_cselect_b32 s{sT0}, {0 if afirst else QP - QB}, 0
        s_cmp_eq_u32 s{sCNT}, {na + 1}
        s_cselect_b32 s{sT0}, {QB - QP}, s{sT0}
        s_add_u32 s{sA}, s{sA}, s{sT0}
        s_add_u32 s{sC}, s{sC}, s{sT0}
        s_cmp_lt_u32 s{sCNT}, {SPIN_LIMIT}
        s_cbranch_scc1 L_qpoll
        L_qgo:""")
    else:
        poll_tail("L_qpoll", "L_qgo")
    stamp(5)
    for h in range(2):
        r = G + 4 * h
        a(f"v_xor_b32 v15, v{r+2}, v13" if h == 0 else f"v_bitop3_b32 v15, v15, v{r+2}, v13 bitop3:0xf6")
        for kc in range(1, 4):
            q = G + 4 * (kc * 2 + h)
            a(f"v_bitop3_b32 v15, v15, v{q+2}, v13 bitop3:0xf6")
            a(f"v_pk_add_f32 v[{r}:{r+1}], v[{r}:{r+1}], v[{q}:{q+1}]")
            a(f"v_pk_add_f32 v[{r+2}:{r+3}], v[{r+2}:{r+3}], v[{q+2}:{q+3}]")
        a(f"v_cvt_pk_bf16_f32 v{r}, v{r}, v{r+1}")
        a(f"v_cvt_pk_bf16_f32 v{r+1}, v{r+2}, v{r+3}")
        a(f"ds_write_b64 v7, v[{r}:{r+1}] offset:{L_Q + 512*h}")
    a(f"""v_and_b32 v15, s{sFF}, v15
    v_cmp_ne_u32 vcc, 0, v15
    s_cmp_eq_u64 vcc, 0
    s_cselect_b32 s{sA}, 1, 0
    v_mov_b32 v14, s{sA}
    v_mov_b32 v15, {L_FLAG}
    ds_write_b32 v15, v14""")
    if stamps:
        stamp(6)
        a(f"s_waitcnt lgkmcnt(0)\nv_mov_b32 v15, {L_STQ}")
        for k in (0, 1, 3, 4, 5, 7, 15):
            a(f"v_mov_b32 v14, s{sSTAMP0+2*k if k < 15 else sCNT}\nds_write_b32 v15, v14 offset:{4*k}")
    a(f"""s_waitcnt lgkmcnt(0)
    s_barrier
    s_endpgm""")

    vKo, vVo = 4, 5
    KD, VD, WD = 32, 64, 96
    W2D = WD + 32
    vM, vPM, vT, vWo, vI = 8, 12, 24, 14, 15
    vQa, vOa, vMa, vMr = 16, 17, 18, 23
    vWA = 142
    a(f""".p2align {kalign}
    L_kreg:
    s_load_dwordx2 s[{pWO}:{pWO+1}], s[0:1], 32
    s_load_dwordx4 s[{pW1}:{pW1+3}], s[0:1], 48
    s_load_dwordx4 s[{pW2}:{pW2+3}], s[0:1], 64
    v_and_b32 v0, 63, v0
    s_and_b32 s{sG}, s2, 7
    s_lshr_b32 s{sS}, s2, 3
    s_sub_u32 s{sW}, s3, 1
    v_and_b32 v2, 15, v0
    v_lshrrev_b32 v3, 4, v0
    v_and_b32 v6, 7, v2
    v_lshlrev_b32 v{vKo}, 8, v6
    v_lshrrev_b32 v6, 3, v2
    v_lshl_add_u32 v{vKo}, v6, 6, v{vKo}
    v_lshl_add_u32 v{vKo}, v3, 4, v{vKo}
    v_lshlrev_b32 v{vVo}, 10, v3
    v_lshl_add_u32 v{vVo}, v2, 4, v{vVo}
    s_lshl_b32 s{sA}, s{sG}, 23
    s_lshl_b32 s{sB}, s{sS}, 12
    s_add_u32 s{sA}, s{sA}, s{sB}
    s_lshl_b32 s{sB}, s{sW}, 17
    s_add_u32 s{sA}, s{sA}, s{sB}
    s_add_u32 s{sA}, s{sA}, {28672*256}
    s_add_u32 s{sB}, s{sA}, 0x80000
    s_mov_b32 s{sV+3}, 0x20000
    s_lshl_b32 s{sV+2}, 1, 26
    s_waitcnt lgkmcnt(0)
    s_load_dword s{sEP}, s[{sWS}:{sWS+1}], {EPOCH}
    s_mov_b32 s{sV}, s{sK+2}
    s_mov_b32 s{sV+1}, s{sK+3}
    s_mov_b32 s{sK+2}, s{sV+2}
    s_mov_b32 s{sK+3}, s{sV+3}
    s_mov_b32 s{sWS+3}, s{sV+3}
    s_lshl_b32 s{sWS+2}, 1, 28""")
    if tlb:
        a(f"""s_load_dword s{sT0}, s[{sV}:{sV+1}], s{sA}
        s_lshl_b32 s{sC}, s{sG}, 19
        s_load_dword s{sT0}, s[{pWO}:{pWO+1}], s{sC}
        s_load_dword s{sT0}, s[{pW1}:{pW1+1}], 0
        s_load_dword s{sT0}, s[{pW3}:{pW3+1}], 0
        s_load_dword s{sT0}, s[{pW2}:{pW2+1}], 0
        s_load_dword s{sT0}, s[{pW2+2}:{pW2+3}], 0""")

    def kvload(n):
        if n < 8:
            tau, eta, lam = n >> 2, (n >> 1) & 1, n & 1
            r = KD + n * 4
            a(f"buffer_load_dwordx4 v[{r}:{r+3}], v{vKo}, s[{sK}:{sK+3}], s{sA+tau} offen offset:{eta*2048+lam*128} nt")
        else:
            k = n - 8
            tau, i = divmod(k, 4)
            r = VD + k * 4
            a(f"buffer_load_dwordx4 v[{r}:{r+3}], v{vVo}, s[{sV}:{sV+3}], s{sA+tau} offen offset:{i*256} nt")
    if b0pos == 0:
        for n in range(win0):
            if n == pre: a("s_barrier")
            kvload(n)
        if not dbg: stamp(1)
    else:
        for n in range(pre):
            kvload(n)
    a(f"""s_mov_b32 s{sX+3}, s{sV+3}
    s_movk_i32 s{sX+2}, 1024
    s_mov_b32 s{sOUT}, s{pW2+2}
    s_mov_b32 s{sOUT+1}, s{pW2+3}
    s_movk_i32 s{sOUT+2}, 1024
    s_mov_b32 s{sOUT+3}, s{sV+3}
    s_mov_b32 s{sFF}, 0xff
    s_mov_b32 s{sHI}, 0xffff0000
    s_mov_b32 s{sCNT}, 0
    s_mov_b32 s{sL2E}, {hex(LOG2E)}""")
    build_masks(vM)
    a(f"""v_or_b32 v{vPM}, v{vM}, v{vM+2}
    v_or_b32 v{vPM+1}, v{vM+1}, v{vM+3}
    v_cmp_gt_u32 vcc, 8, v2""")
    for i in range(4):
        a(f"v_cndmask_b32 v{vM+i}, 0, v{vM+i}, vcc")
    a(f"""v_and_b32 v{vI}, 1, v3
    v_lshlrev_b32 v{vI}, 1, v{vI}
    v_lshrrev_b32 v6, 1, v3
    v_add_u32 v{vI}, v{vI}, v6
    s_and_b32 s{sKC}, s{sS}, 3
    s_lshr_b32 s{sC}, s{sS}, 2
    s_lshl2_add_u32 s{sT3}, s{sG}, s{sC}   ; H (O role)
    s_sub_u32 s{sCB}, s{sC}, 4
    s_lshl_b32 s{sCB}, s{sCB}, 3
    s_add_u32 s{sCB}, s{sCB}, s{sG}
    s_cmp_lt_u32 s{sS}, 16
    s_cselect_b32 s{sROLE}, 0, 1
    s_cselect_b32 s{sCB}, 0, s{sCB}
    s_cmp_ge_u32 s{sCB}, 28
    s_cselect_b32 s{sROLE}, 2, s{sROLE}
    s_lshl2_add_u32 s{sT2}, s{sCB}, s{sKC} ; f (F role)
    v_lshrrev_b32 v6, 2, v2
    v_lshlrev_b32 v{vQa}, 8, v6
    v_and_b32 v7, 2, v2
    v_lshl_add_u32 v{vQa}, v7, 5, v{vQa}
    v_lshl_add_u32 v{vQa}, v3, 4, v{vQa}
    v_lshlrev_b32 v{vOa}, 9, v3
    v_lshl_add_u32 v{vOa}, v2, 5, v{vOa}
    s_lshl_b32 s{sC}, s{sW}, 11
    s_add_u32 s{sC}, s{sC}, {L_OW}
    v_add_u32 v{vOa}, s{sC}, v{vOa}
    v_lshlrev_b32 v{vMr}, 4, v6
    v_add_u32 v{vMr}, {L_ML}, v{vMr}
    s_lshl_b32 s{sC}, s{sW}, 2
    v_add_u32 v{vMa}, s{sC}, v{vMr}
    v_lshlrev_b32 v6, 2, v0
    v_add_u32 v6, {L_DUMMY}, v6
    v_and_b32 v7, 0x33, v0
    v_cmp_eq_u32 vcc, 0, v7
    v_cndmask_b32 v{vMa}, v6, v{vMa}, vcc
    v_lshlrev_b32 v{vWo}, 10, v{vI}
    v_lshl_add_u32 v{vWo}, v2, 4, v{vWo}  ; i(g4)*1024 + c*16
    v_lshlrev_b32 v19, 4, v0""")
    if p1:
        a("s_barrier")
        for n in range(n1):
            if n >= p1:
                a(f"s_waitcnt vmcnt({p1 - 1})")
            kvload(n)
        a("s_barrier")
        if n2:
            for n in range(n1, n1 + n2):
                kvload(n)
            a("s_barrier")
        if not dbg: stamp(1)
        for n in range(n1 + n2, 16):
            if n >= win:
                a(f"s_waitcnt vmcnt({win - 1})")
            kvload(n)
    else:
        if b0pos != 0:
            a("s_barrier")
            for n in range(pre, win0):
                kvload(n)
            if not dbg: stamp(1)
        for n in range(win0, 16):
            a(f"s_waitcnt vmcnt({min(win, n) - 1})")
            kvload(n)
    a("s_waitcnt lgkmcnt(0)")
    epoch_to_tag()
    a(f"v_lshlrev_b32 v6, 3, v0")
    for j in range(4):
        a(f"v_alignbit_b32 v{vT+j}, s{sTAG}, s{sTAG}, v6")
        if j < 3:
            a(f"v_add_u32 v6, 8, v6")
    a(f"""s_lshl1_add_u32 s{sRHO}, s{sW}, s{sS}
    s_and_b32 s{sRHO}, s{sRHO}, {7 if rho else 0}
    s_lshl2_add_u32 s{sWOF}, s{sT3}, s{sW}
    s_lshl3_add_u32 s{sWOF}, s{sWOF}, s{sRHO}
    s_lshl4_add_u32 s{sWOF}, s{sWOF}, s{sKC}
    s_lshl_b32 s{sWOF}, s{sWOF}, 8
    s_cmp_eq_u32 s{sROLE}, 0
    s_cselect_b32 s{pWO+2}, 0x400000, 0
    s_mov_b32 s{pWO+3}, 0x20000
    s_mov_b32 s{sSTR+1}, 0""")
    WAF = f"""s_lshl_b32 s{sD}, s{sKC}, 7
    s_lshl_b32 s{sC}, s{sW}, 5
    s_add_u32 s{sD}, s{sD}, s{sC}
    s_mul_i32 s{sD}, s{sD}, 3584
    s_lshl_b32 s{sC}, s{sCB}, 7
    s_add_u32 s{sD}, s{sD}, s{sC}
    s_movk_i32 s{sC}, 3584
    v_mul_u32_u24 v6, s{sC}, v{vI}
    v_and_b32 v20, 7, v0
    v_lshl_add_u32 v6, v20, 4, v6
    v_add_u32 v6, s{sD}, v6
    v_lshl_add_u64 v[{vWA}:{vWA+1}], v[6:7], 0, s[{pW1}:{pW1+1}]
    v_lshl_add_u64 v[20:21], v[6:7], 0, s[{pW3}:{pW3+1}]
    v_cmp_gt_u32 vcc, 8, v2
    v_cndmask_b32 v{vWA}, v20, v{vWA}, vcc
    v_cndmask_b32 v{vWA+1}, v21, v{vWA+1}, vcc
    s_movk_i32 s{sSTR}, {4*3584}
"""
    a(f"""L_wad:
    s_lshl2_add_u32 s{sC}, s{sG}, s{sW}
    s_lshl_b32 s{sC}, s{sC}, 5
    s_add_u32 s{sC}, s{sC}, s{sS}
    s_lshl_b32 s{sA}, s{sC}, 9
    s_add_u32 s{sA}, s{sA}, {OP}
    s_lshl_b32 s{sB}, s{sC}, 4
    s_add_u32 s{sB}, s{sB}, {ML}
    s_lshl_b32 s{sC}, s{sW}, 4
    s_add_u32 s{sC}, s{sC}, {L_ML}
    v_mov_b32 v22, s{sC}
    s_lshl_b32 s{sC}, s{sW}, 9
    s_add_u32 s{sC}, s{sC}, {L_OW}
    v_lshl_add_u32 v1, v0, 4, s{sC}
    v_mov_b32 v6, {L_FLAG}
    v_mov_b32 v20, {hex(SCALE)}""")
    vMo_, vGo_, vTo_ = 136, 137, 138
    a(f"""v_lshrrev_b32 v6, 3, v0
    v_and_b32 v7, 3, v0
    v_lshl_add_u32 v{vMo_}, v6, 2, v7
    v_lshlrev_b32 v{vMo_}, 4, v{vMo_}
    v_and_b32 v7, 7, v0
    v_xor_b32 v7, s{sRHO}, v7
    v_lshlrev_b32 v{vGo_}, 11, v6
    v_lshl_add_u32 v{vGo_}, v7, 4, v{vGo_}
    v_lshlrev_b32 v7, 3, v7
    v_add_u32 v7, 24, v7
    v_alignbit_b32 v{vTo_}, s{sTAG}, s{sTAG}, v7
    s_lshl4_add_u32 s{sT0}, s{sG}, s{sS}
    s_lshr_b32 s{sT1}, s{sT0}, 5
    s_bfe_u32 s{sXO}, s{sT0}, 0x10004
    s_lshl1_add_u32 s{sXO}, s{sS}, s{sXO}
    s_lshl_b32 s{sT1}, s{sT1}, 5
    s_add_u32 s{sXO}, s{sXO}, s{sT1}
    s_lshl_b32 s{sXO}, s{sXO}, 3""")
    a(f"v_mov_b32 v6, {L_FLAG}")
    wn = [0]

    def woloads(k):
        for _ in range(k):
            t = wn[0]
            a(f"buffer_load_dwordx4 v[{WD+4*t}:{WD+4*t+3}], v{vWo}, s[{pWO}:{pWO+3}], s{sWOF} offen nt")
            if t < 7:
                a(f"s_xor_b32 s{sWOF}, s{sWOF}, {hex((t ^ (t + 1)) << 12)}")
            wn[0] += 1

    def wloads(k):
        for _ in range(k):
            t = wn[0]
            a(f"global_load_dwordx4 v[{WD+4*t}:{WD+4*t+3}], v[{vWA}:{vWA+1}], off nt")
            if t < 7:
                a(f"v_lshl_add_u64 v[{vWA}:{vWA+1}], s[{sSTR}:{sSTR+1}], 0, v[{vWA}:{vWA+1}]")
            wn[0] += 1
    for _ in range(wpre):
        if wwait: a(f"s_waitcnt vmcnt({win - 1})")
        woloads(1)
    if tv: a("s_waitcnt vmcnt(0)")
    if not dbg: stamp(2)
    a("s_barrier")
    stamp(3)
    B0, SD = 144, 152
    a(f"""ds_read_b128 v[{B0}:{B0+3}], v{vQa} offset:{L_Q}
    ds_read_b128 v[{B0+4}:{B0+7}], v{vQa} offset:{L_Q+128}
    ds_read_b32 v6, v6
    s_waitcnt vmcnt({8 + wpre})""")
    woloads(spr[0])
    a("s_waitcnt lgkmcnt(0)")
    for lam in range(2):
        for te in range(4):
            r = KD + (te * 2 + lam) * 4
            d = SD + te * 4
            c = "0" if lam == 0 else f"v[{d}:{d+3}]"
            a(f"v_mfma_f32_16x16x32_bf16 v[{d}:{d+3}], v[{r}:{r+3}], v[{B0+4*lam}:{B0+4*lam+3}], {c}")
    woloads(spr[1])
    a(f"v_readfirstlane_b32 s{sCOL}, v6")
    for tau in range(2):
        for i in range(4):
            a(f"v_permlane32_swap_b32 v{SD+8*tau+i}, v{SD+8*tau+4+i}")
    Sx = [SD + 8 * tau + i for tau in range(2) for i in range(4)]
    for s in Sx:
        dpp("add_f32", s, s + 4, s, "quad_perm:[2,3,2,3]")
    P2 = [Sx[0], Sx[2], Sx[4], Sx[6]]
    for s in P2: a(f"v_cvt_pk_bf16_f32 v{s+1}, v{s}, v{s+1}")
    for s in P2: a(f"v_lshlrev_b32 v{s}, 16, v{s+1}\nv_and_b32 v{s+1}, s{sHI}, v{s+1}")
    for s in P2: a(f"v_pk_mul_f32 v[{s}:{s+1}], v[{s}:{s+1}], v[20:21] op_sel_hi:[1,0]")
    for s in P2: a(f"v_cvt_pk_bf16_f32 v{s+1}, v{s}, v{s+1}")
    for s in P2: a(f"v_lshlrev_b32 v{s}, 16, v{s+1}\nv_and_b32 v{s+1}, s{sHI}, v{s+1}")
    a(f"""v_max3_f32 v28, v{Sx[0]}, v{Sx[1]}, v{Sx[2]}
    v_max3_f32 v29, v{Sx[3]}, v{Sx[4]}, v{Sx[5]}
    v_max3_f32 v28, v{Sx[6]}, v{Sx[7]}, v28
    v_max_f32 v28, v28, v29
    v_mov_b32 v29, v28
    v_permlane32_swap_b32 v28, v29
    v_max_f32 v28, v28, v29
    v_mov_b32 v29, v28
    v_permlane16_swap_b32 v28, v29
    v_max_f32 v28, v28, v29
    ds_write_b32 v{vMa}, v28""")
    a(f"""s_waitcnt lgkmcnt(0)
    s_barrier
    ds_read_b128 v[28:31], v{vMr}""")
    woloads(spr[2])
    a("s_waitcnt lgkmcnt(0)")
    if dbg: stamp(1)
    a(f"""    v_max3_f32 v28, v28, v29, v30
    v_max_f32 v28, v28, v31
    v_mul_f32 v20, s{sL2E}, v28""")
    for k in range(8):
        a(f"v_fma_f32 v{Sx[k]}, v{Sx[k]}, s{sL2E}, -v20")
    for k in range(8):
        a(f"v_exp_f32 v{Sx[k]}, v{Sx[k]}")
    a(f"""v_pk_add_f32 v[20:21], v[{Sx[0]}:{Sx[1]}], v[{Sx[2]}:{Sx[3]}]
    v_pk_add_f32 v[28:29], v[{Sx[4]}:{Sx[5]}], v[{Sx[6]}:{Sx[7]}]
    v_pk_add_f32 v[20:21], v[20:21], v[28:29]
    v_add_f32 v20, v20, v21
    v_mov_b32 v21, v20
    v_permlane32_swap_b32 v20, v21
    v_add_f32 v20, v20, v21
    v_mov_b32 v21, v20
    v_permlane16_swap_b32 v20, v21
    v_add_f32 v20, v20, v21
    ds_write_b32 v{vMa}, v20 offset:64""")
    XR = [SD + 4, SD + 6, SD + 12, SD + 14, B0, B0 + 2, B0 + 4, B0 + 6]
    for k in range(8):
        a(f"v_cvt_pk_bf16_f32 v{XR[k]+1}, v{Sx[k]}, v{Sx[k]}")
    for k in range(8):
        dpp("and_b32", XR[k], XR[k] + 1, vPM, "quad_perm:[0,0,0,0]")
    for k in range(8):
        dpp("and_b32", XR[k] + 1, XR[k] + 1, vPM + 1, "quad_perm:[0,0,0,0]")
    a(f"""v_mov_b32 v30, s{sTAG}
    v_mov_b32 v31, s{sTAG}""")
    if dbg: stamp(2)
    a(f"""s_waitcnt lgkmcnt(0)
    s_barrier""")
    if dbg: stamp(13)
    a(f"""ds_read_b128 v[40:43], v22
    ds_read_b128 v[44:47], v22 offset:64""")
    woloads(spr[3])
    assert wn[0] == 8
    a(f"""s_mov_b64 exec, 1
    s_waitcnt lgkmcnt(0)
    v_max3_f32 v28, v40, v41, v42
    v_max_f32 v28, v28, v43
    v_pk_add_f32 v[44:45], v[44:45], v[46:47]
    v_add_f32 v29, v44, v45""")
    if dbg: stamp(14)
    pub_store(28, 19, sB)
    a("s_mov_b64 exec, -1")
    stamp(4)
    OA = KD
    for k in range(8):
        a(f"s_waitcnt vmcnt({7 - k + 9})")
        r = VD + k * 4
        for u in range(2):
            d = OA + 4 * u
            c = "0" if k == 0 else f"v[{d}:{d+3}]"
            a(f"v_mfma_f32_16x16x16_bf16 v[{d}:{d+3}], v[{XR[k]}:{XR[k]+1}], v[{r+2*u}:{r+2*u+1}], {c}")
    stamp(5)
    if wodiag:
        a("s_waitcnt vmcnt(1)")
        stamp(14)
    a(f"""ds_write_b128 v{vOa}, v[{OA}:{OA+3}]
    ds_write_b128 v{vOa}, v[{OA+4}:{OA+7}] offset:16
    s_waitcnt lgkmcnt(0)
    s_barrier
    s_mov_b32 exec_hi, 0""")
    for w in range(4):
        a(f"ds_read_b128 v[{48+4*w}:{48+4*w+3}], v1 offset:{2048*w}")
    sum4(48)
    a(f"v_bfi_b32 v51, s{sFF}, v{vT+3}, v51")
    pub_store(48, 19, sA)
    a("s_mov_b32 exec_hi, -1")
    stamp(6)
    a(f"""s_cmp_eq_u32 s{sROLE}, 1
    s_cbranch_scc1 L_frole
    s_cmp_eq_u32 s{sROLE}, 2
    s_cbranch_scc1 L_kdone
    s_lshl_b32 s{sA}, s{sT3}, 14
    s_add_u32 s{sA}, s{sA}, {OP}
    s_lshl_b32 s{sB}, s{sW}, 7
    s_add_u32 s{sA}, s{sA}, s{sB}
    s_lshl_b32 s{sB}, s{sT3}, 9
    s_add_u32 s{sB}, s{sB}, {ML}""")

    GD, GE = 32, 64
    vGo, vMo = vGo_, vMo_
    AS, DD, RR = 84, 92, 80

    def gemv(src, n, wbase, bank, dreg, bc=lambda t: t, after=None):
        def sel(t):
            s = AS + 4 * (t & 1)
            for i in range(4):
                dpp("and_b32", s + i, src, vM + i, f"row_newbcast:{bc(t)}", bm=bank)
        sel(0)
        for t in range(n):
            if t < n - 1:
                sel(t + 1)
            s = AS + 4 * (t & 1)
            c = "0" if t == 0 else f"v[{dreg}:{dreg+3}]"
            a(f"v_mfma_f32_16x16x32_bf16 v[{dreg}:{dreg+3}], v[{s}:{s+3}], v[{wbase+4*t}:{wbase+4*t+3}], {c}")

    def xflag_store(base):
        a(f"""s_lshl_b32 s{sT1}, s{sG}, 7
        s_add_u32 s{sT1}, s{sT1}, {base}
        v_lshlrev_b32 v5, 10, v0
        s_mov_b64 exec, 0xff
        buffer_store_dword v30, v5, s[{sWS}:{sWS+3}], s{sT1} offen sc1
        s_mov_b64 exec, -1""")

    def xflag_poll(name, base, vo, tmp):
        a(f"""s_lshl_b32 s{sT1}, s{sG}, 10
        s_add_u32 s{sT1}, s{sT1}, {base}
        {name}:
        buffer_load_dword v{tmp}, v{vo}, s[{sWS}:{sWS+3}], s{sT1} offen sc1
        s_waitcnt vmcnt(0)
        v_cmp_ne_u32 vcc, s{sTAG}, v{tmp}""")
        poll_tail(name, name + "_go")

    def oloads(G):
        for u in range(4):
            a(f"buffer_load_dwordx4 v[{G+4*u}:{G+4*u+3}], v{vGo}, s[{sWS}:{sWS+3}], s{sA} offen offset:{512*u} sc1")

    def ochain(G):
        for i in range(4):
            dpp("mul_f32", RR + i, 52, G + i, "quad_perm:[0,0,0,0]")
        for u in range(1, 4):
            for i in range(4):
                dpp("fmac_f32", RR + i, 52, G + 4 * u + i, f"quad_perm:[{u},{u},{u},{u}]")
    a(f"""L_mpoll:
    buffer_load_dwordx4 v[52:55], v{vMo}, s[{sWS}:{sWS+3}], s{sB} offen sc1""")
    oloads(GD)
    a(f"""s_waitcnt vmcnt(4)
    v_cmp_ne_u32 vcc, s{sTAG}, v55""")
    poll_tail("L_mpoll", "L_mgo")
    oloads(GE)
    stamp(13)
    if xfl and xpos == 13:
        a(f"""s_lshl2_add_u32 s{sT0}, s{sS}, s{sW}
        s_cmp_lg_u32 s{sT0}, 3
        s_cbranch_scc1 L_nx1""")
        xflag_store(XF1)
        a("L_nx1:")
    a(f"""s_lshl_b32 s{sC}, s{sW}, 10
    s_add_u32 s{sC}, s{sC}, {L_RED}
    v_lshl_add_u32 v22, v0, 4, s{sC}
    v_and_b32 v7, 1, v0
    v_lshlrev_b32 v7, 4, v7
    v_lshrrev_b32 v1, 1, v0
    v_add_u32 v7, v7, v1
    v_lshlrev_b32 v7, 4, v7
    v_lshlrev_b32 v57, 1, v{vI}""")
    dpp("max_f32", 6, 52, 52, "quad_perm:[1,0,3,2]")
    dpp("max_f32", 6, 6, 6, "quad_perm:[2,3,0,1]")
    wave_red(6, sT0, op="max", steps=(8,))
    a(f"""v_subrev_f32 v52, s{sT0}, v52
    v_mul_f32 v52, s{sL2E}, v52
    v_exp_f32 v52, v52
    v_mul_f32 v6, v52, v53""")
    dpp("add_f32", 6, 6, 6, "quad_perm:[1,0,3,2]")
    dpp("add_f32", 6, 6, 6, "quad_perm:[2,3,0,1]")
    wave_red(6, sT0, steps=(8,))
    a(f"""v_rcp_f32 v6, s{sT0}
    v_mul_f32 v52, v52, v6
    L_opoll:
    s_waitcnt vmcnt(4)""")
    tagcheck(6, [GD + 4 * u + 3 for u in range(4)], [vTo_] * 4)
    a("s_cbranch_vccz L_ogo")
    oloads(GD)
    a("s_waitcnt vmcnt(4)")
    tagcheck(6, [GE + 4 * u + 3 for u in range(4)], [vTo_] * 4)
    a("s_cbranch_vccz L_oge")
    oloads(GE)
    a(f"""s_add_u32 s{sCNT}, s{sCNT}, 1
    s_cmp_lt_u32 s{sCNT}, {SPIN_LIMIT}
    s_cbranch_scc1 L_opoll
    L_oge:""")
    ochain(GE)
    a("s_branch L_oj\nL_ogo:")
    ochain(GD)
    a("L_oj:")
    stamp(7)
    if xfl and xpos == 7:
        a(f"""s_lshl2_add_u32 s{sT0}, s{sS}, s{sW}
        s_cmp_lg_u32 s{sT0}, 3
        s_cbranch_scc1 L_nx1""")
        xflag_store(XF1)
        a("L_nx1:")
    xreduce4(RR)
    dpp("add_f32", RR, RR, RR, "row_ror:8")
    a(f"v_cvt_pk_bf16_f32 v{RR}, v{RR}, v{RR}")
    gemv(RR, 8, WD, "0xf", DD)
    a(f"""s_lshl_b32 s{sA}, s{sKC}, 5
    s_add_u32 s{sA}, s{sA}, s{sT3}
    s_lshl_b32 s{sA}, s{sA}, 9
    s_add_u32 s{sA}, s{sA}, {HP}
    s_lshr_b32 s{sCB}, s{sS}, 2
    s_lshl3_add_u32 s{sCB}, s{sCB}, s{sG}
    s_cmp_ge_u32 s{sCB}, 28
    s_cselect_b32 s{sD}, 8, 0
    s_sub_u32 s{sCB}, s{sCB}, s{sD}
    s_lshl2_add_u32 s{sT2}, s{sCB}, s{sKC}
    s_lshl_b32 s{sD}, s{sD}, 25
    ds_write_b128 v22, v[{DD}:{DD+3}]
    s_waitcnt lgkmcnt(0)
    s_barrier""")
    stamp(8)
    a(f"""s_cmp_lg_u32 s{sW}, 0
    s_cbranch_scc1 L_onot0
    s_mov_b32 exec_hi, 0""")
    for w in range(4):
        a(f"ds_read_b128 v[{112+4*w}:{112+4*w+3}], v7 offset:{L_RED+1024*w}")
    sum4(112)
    for j in range(4):
        a(f"v_bfi_b32 v{112+j}, s{sFF}, v{vT+j}, v{112+j}")
    a(f"""buffer_store_dwordx4 v[112:115], v19, s[{sWS}:{sWS+3}], s{sA} offen sc1
    s_mov_b32 exec_hi, -1
    L_onot0:
    s_barrier
    buffer_load_short_d16_hi v56, v57, s[{sX}:{sX+3}], s{sXO} offen""")
    stamp(9)
    a(f"""s_lshr_b32 s{sA}, s{sKC}, 1
    s_and_b32 s{sB}, s{sKC}, 1
    s_lshl1_add_u32 s{sA}, s{sCB}, s{sA}
    s_lshl3_add_u32 s{sA}, s{sA}, s{sB}
    s_lshl_b32 s{sA}, s{sA}, 12
    s_lshl_b32 s{sB}, s{sW}, 8
    s_add_u32 s{sA}, s{sA}, s{sB}
    s_add_u32 s{pW2}, s{pW2}, s{sA}
    s_addc_u32 s{pW2+1}, s{pW2+1}, 0""")
    for t in range(4):
        a(f"global_load_dwordx4 v[{WD+4*t}:{WD+4*t+3}], v{vWo}, s[{pW2}:{pW2+1}] nt")
        if t < 3:
            a(f"v_add_u32 v{vWo}, 0x2000, v{vWo}")
    a(f"""s_lshl4_add_u32 s{sT0}, s{sG}, s{sS}      ; G
    s_lshr_b32 s{sT1}, s{sT0}, 5
    s_bfe_u32 s{sC}, s{sT0}, 0x10004
    s_lshl1_add_u32 s{sC}, s{sS}, s{sC}       ; n
    s_lshl_b32 s{sHA}, s{sT1}, 14
    s_lshl_b32 s{sB}, s{sC}, 4
    s_add_u32 s{sHA}, s{sHA}, s{sB}
    s_add_u32 s{sHA}, s{sHA}, {HP}
    v_and_b32 v58, 31, v0
    v_lshlrev_b32 v58, 9, v58
    s_lshl_b32 s{sC}, s{sC}, 3""")
    for j in range(4):
        a(f"s_add_u32 s{sT3}, s{sC}, {8*j}")
        a(f"v_mov_b32 v7, s{sT3}")
        a(f"v_alignbit_b32 v{116+j}, s{sTAG}, s{sTAG}, v7")
    a(f"""s_lshl_b32 s{sC}, s{sT0}, 3""")
    for j in range(4):
        a(f"s_add_u32 s{sT3}, s{sC}, {8*j}")
        a(f"v_mov_b32 v7, s{sT3}")
        a(f"v_alignbit_b32 v{120+j}, s{sTAG}, s{sTAG}, v7")
    a(f"""L_f2:
    s_lshl_b32 s{sC}, s{sCB}, 8
    s_add_u32 s{sC}, s{sC}, {ST}
    v_lshlrev_b32 v21, 4, v2
    s_lshl_b32 s{sA}, s{sT2}, 12
    s_add_u32 s{sA}, s{sA}, {GP}
    s_lshl2_add_u32 s{sB}, s{sT2}, s{sW}
    s_lshl_b32 s{sB}, s{sB}, 9
    s_add_u32 s{sD}, s{sD}, s{sB}
    s_add_u32 s{sD}, s{sD}, {FP}
    L_spoll:
    buffer_load_dwordx4 v[36:39], v21, s[{sWS}:{sWS+3}], s{sC} offen sc1""")
    GU = 64

    def uloads():
        for u in range(4):
            a(f"buffer_load_dwordx4 v[{GU+4*u}:{GU+4*u+3}], v19, s[{sWS}:{sWS+3}], s{sA} offen offset:{1024*u} sc1")
    a(f"""s_waitcnt vmcnt(0)
    v_cmp_ne_u32 vcc, s{sTAG}, v39""")
    poll_tail("L_spoll", "L_sgo")
    uloads()
    a(f"""s_cmp_lg_u32 s{sW}, 1
    s_cbranch_scc1 L_nohp
    buffer_load_dwordx4 v[124:127], v58, s[{sWS}:{sWS+3}], s{sHA} offen sc1
    L_nohp:""")
    stamp(10)
    dpp("add_f32", 6, 36, 36, "row_ror:8")
    for k in (4, 2, 1):
        dpp("add_f32", 6, 6, 6, f"row_ror:{k}")
    a(f"""v_mul_f32 v6, 0x3d800000, v6
    v_sub_f32 v36, v36, v6
    v_mul_f32 v36, v36, v36
    v_fmac_f32 v37, 0x42000000, v36""")
    for k in (8, 4, 2, 1):
        dpp("add_f32", 37, 37, 37, f"row_ror:{k}")
    round_bf16(6, "v6")
    a(f"""v_mul_f32 v37, 0x3b000000, v37
    v_sub_f32 v6, 0, v6""")
    round_bf16(37, "v37")
    a(f"v_add_f32 v37, {hex(EPS)}, v37")
    round_bf16(37, "v37")
    a(f"v_sqrt_f32 v37, v37")
    round_bf16(37, "v37")
    a(f"""v_rcp_f32 v37, v37
    s_branch L_uchk
    L_upoll:""")
    uloads()
    a("L_uchk:\ns_waitcnt vmcnt(0)")
    tagcheck(7, [GU + 4 * u + 3 for u in range(4)], [vT + 3] * 4)
    poll_tail("L_upoll", "L_ugo")
    stamp(11)
    a(f"""v_pk_add_f32 v[32:33], v[{GU}:{GU+1}], v[{GU+4}:{GU+5}]
    v_pk_add_f32 v[34:35], v[{GU+2}:{GU+3}], v[{GU+6}:{GU+7}]
    v_pk_add_f32 v[{GU+8}:{GU+9}], v[{GU+8}:{GU+9}], v[{GU+12}:{GU+13}]
    v_pk_add_f32 v[{GU+10}:{GU+11}], v[{GU+10}:{GU+11}], v[{GU+14}:{GU+15}]
    v_pk_add_f32 v[32:33], v[32:33], v[{GU+8}:{GU+9}]
    v_pk_add_f32 v[34:35], v[34:35], v[{GU+10}:{GU+11}]""")
    xreduce4(32)
    dpp("fmac_f32", 32, 32, 6, "row_shl:4")
    a(f"v_mul_f32 v33, v32, v37")
    round_bf16(33, "v33")
    a(f"""v_mul_f32 v34, {hex(LOG2E | 0x80000000)}, v33
    v_exp_f32 v34, v34
    v_add_f32 v34, 1.0, v34
    v_rcp_f32 v34, v34
    v_mul_f32 v34, v33, v34""")
    round_bf16(34, "v34")
    dpp("mul_f32", 34, 33, 34, "row_shl:8")
    a(f"v_cvt_pk_bf16_f32 v34, v34, v34")
    gemv(34, 4, WD, "0xf", DD)
    a(f"s_mov_b32 exec_hi, 0")
    for j in range(4):
        a(f"v_bfi_b32 v{DD+j}, s{sFF}, v{vT+j}, v{DD+j}")
    a(f"""buffer_store_dwordx4 v[{DD}:{DD+3}], v19, s[{sWS}:{sWS+3}], s{sD} offen sc1
    s_mov_b32 exec_hi, -1""")
    stamp(12)
    a(f"""s_cmp_lg_u32 s{sW}, 1
    s_cbranch_scc1 L_kdone
    s_lshl_b32 s{sA}, s{sT0}, 4
    s_add_u32 s{sA}, s{sA}, {FP}
    s_add_u32 s{sB}, s{sA}, {64*2048}
    v_lshlrev_b32 v6, 11, v0""")
    a("s_branch L_hchk")
    a(f"""L_hpoll:
    buffer_load_dwordx4 v[124:127], v58, s[{sWS}:{sWS+3}], s{sHA} offen sc1
    s_waitcnt vmcnt(0)
    L_hchk:""")
    tagcheck(7, [124, 125, 126, 127], [116, 117, 118, 119])
    poll_tail("L_hpoll", "L_hgo")
    xreduce4(124)
    for k in (8, 4, 2, 1):
        dpp("add_f32", 124, 124, 124, f"row_ror:{k}")
    a(f"v_mul_f32 v124, 0.5, v124")
    round_bf16(124, "v124")
    a(f"""v_and_b32 v56, s{sHI}, v56
    v_add_f32 v56, v56, v124""")
    round_bf16(56, "v56")
    for j in range(4):
        a(f"v_and_b32 v{36+j}, s{sFF}, v{120+j}")
    if rdelay:
        a(f"s_sleep {rdelay}")
    stamp(14)
    a(f"""L_fpoll:
    buffer_load_dwordx4 v[32:35], v6, s[{sWS}:{sWS+3}], s{sA} offen sc1
    s_mov_b32 exec_hi, 0xffff
    buffer_load_dwordx4 v[36:39], v6, s[{sWS}:{sWS+3}], s{sB} offen sc1
    s_mov_b32 exec_hi, -1
    s_waitcnt vmcnt(0)""")
    tagcheck(7, list(range(32, 40)), [120, 121, 122, 123] * 2)
    poll_tail("L_fpoll", "L_fgo")
    stamp(1)
    a(f"""v_pk_add_f32 v[32:33], v[32:33], v[36:37]
    v_pk_add_f32 v[34:35], v[34:35], v[38:39]""")
    xreduce4(32)
    for k in (8, 4, 2, 1):
        dpp("add_f32", 32, 32, 32, f"row_ror:{k}")
    round_bf16(32, "v32")
    a(f"""v_add_f32 v32, v56, v32
    v_cvt_pk_bf16_f32 v32, v32, v32
    s_mov_b32 exec_lo, 0x00010001
    s_mov_b32 exec_hi, 0x00010001
    buffer_store_short v32, v57, s[{sOUT}:{sOUT+3}], s{sXO} offen
    s_cmp_lg_u32 s2, 0
    s_cbranch_scc1 L_noep
    s_mov_b64 exec, 1
    buffer_store_dword v30, v19, s[{sWS}:{sWS+3}], 0 offen sc1
    L_noep:""")
    stamp(2)
    if probe is not None:
        a(f"""s_cmp_lg_u32 s2, 0
        s_cbranch_scc1 L_kdone
        s_memrealtime s[{sSTAMP0+4}:{sSTAMP0+5}]
        s_waitcnt lgkmcnt(0)
        s_sub_u32 s{sA}, s{sSTAMP0+2*probe}, s{sSTAMP0}
        s_min_u32 s{sA}, s{sA}, 10000
        L_probe:
        s_memrealtime s[{sC}:{sD}]
        s_waitcnt lgkmcnt(0)
        s_sub_u32 s{sB}, s{sC}, s{sSTAMP0+4}
        s_cmp_lt_u32 s{sB}, s{sA}
        s_cbranch_scc1 L_probe""")
    a("s_branch L_kdone")

    a("L_frole:")
    a("v_mov_b32 v7, 0")
    a(WAF)
    wn[0] = 0
    wloads(8)
    a(f"""s_lshl_b32 s{sD}, s{sKC}, 8
    s_lshl_b32 s{sB}, s{sW}, 6
    s_add_u32 s{sD}, s{sD}, s{sB}
    v_and_b32 v7, 7, v0
    v_lshl_add_u32 v6, v7, 2, v{vI}
    v_lshlrev_b32 v6, 1, v6
    buffer_load_short_d16_hi v22, v6, s[{sX}:{sX+3}], s{sD} offen
    v_lshlrev_b32 v28, 7, v7
    v_mov_b32 v23, 0x3f803f80
    v_and_b32 v7, 1, v2
    v_lshlrev_b32 v7, 4, v7
    v_mov_b32 v6, 0xffff
    v_lshlrev_b32 v6, v7, v6
    v_and_b32 v23, v23, v6
    v_bfe_u32 v7, v2, 1, 2""")
    for i in range(4):
        a(f"v_cmp_eq_u32 vcc, {i}, v7")
        a(f"v_cndmask_b32 v{AS+i}, 0, v23, vcc")
        a(f"v_mov_b32 v{AS+4+i}, v{AS+i}")
    a(f"""s_lshl_b32 s{sA}, s{sKC}, 14
    s_lshl_b32 s{sB}, s{sW}, 7
    s_add_u32 s{sA}, s{sA}, s{sB}
    s_add_u32 s{sA}, s{sA}, {HP}
    v_lshrrev_b32 v6, 3, v0
    v_and_b32 v7, 7, v0
    v_lshlrev_b32 v20, 11, v6
    v_lshl_add_u32 v20, v7, 4, v20
    s_lshl2_add_u32 s{sT0}, s{sT2}, s{sW}
    s_lshl_b32 s{sB}, s{sT0}, 4
    s_add_u32 s{sB}, s{sB}, {ST}
    v_and_b32 v5, 3, v0
    v_lshlrev_b32 v5, 4, v5
    v_bfe_u32 v4, v0, 2, 1
    v_lshl_add_u32 v5, v4, 13, v5
    v_bfe_u32 v4, v0, 4, 1
    v_lshl_add_u32 v5, v4, 12, v5
    v_bfe_u32 v4, v0, 3, 1
    v_lshl_add_u32 v5, v4, 7, v5
    v_bfe_u32 v4, v0, 5, 1
    v_lshl_add_u32 v5, v4, 6, v5
    s_lshl_b32 s{sC}, s{sCB}, 14
    s_and_b32 s{sD}, s{sT0}, 15
    s_lshl_b32 s{sD}, s{sD}, 8
    s_add_u32 s{sC}, s{sC}, s{sD}
    s_add_u32 s{sC}, s{sC}, {GP}""")
    if stamps:
        a("s_waitcnt vmcnt(0)")
        stamp(11)
    if xfl:
        xflag_poll("L_fx1", XF1, 28, 29)
        if fdelay: a(f"s_sleep {fdelay}")
    stamp(7)
    HD = 52
    a("L_gpoll:")
    for u in range(4):
        a(f"buffer_load_dwordx4 v[{HD+4*u}:{HD+4*u+3}], v20, s[{sWS}:{sWS+3}], s{sA} offen offset:{512*u} sc1")
    a(f"s_waitcnt vmcnt(0)")
    tagcheck(6, [HD + 4 * u + 3 for u in range(4)], [vT + 3] * 4)
    poll_tail("L_gpoll", "L_ggo")
    stamp(8)
    a(f"""v_pk_add_f32 v[{HD}:{HD+1}], v[{HD}:{HD+1}], v[{HD+4}:{HD+5}]
    v_pk_add_f32 v[{HD+2}:{HD+3}], v[{HD+2}:{HD+3}], v[{HD+6}:{HD+7}]
    v_pk_add_f32 v[{HD+8}:{HD+9}], v[{HD+8}:{HD+9}], v[{HD+12}:{HD+13}]
    v_pk_add_f32 v[{HD+10}:{HD+11}], v[{HD+10}:{HD+11}], v[{HD+14}:{HD+15}]
    v_pk_add_f32 v[{HD}:{HD+1}], v[{HD}:{HD+1}], v[{HD+8}:{HD+9}]
    v_pk_add_f32 v[{HD+2}:{HD+3}], v[{HD+2}:{HD+3}], v[{HD+10}:{HD+11}]
    v_and_b32 v22, s{sHI}, v22""")
    xreduce4(HD)
    dpp("add_f32", HD, HD, HD, "row_ror:8")
    round_bf16(HD, f"v{HD}")
    a(f"""v_add_f32 v{HD}, v22, v{HD}
    v_cvt_pk_bf16_f32 v{HD}, v{HD}, v{HD}
    v_and_b32 v22, s{sHI}, v{HD}
    v_readfirstlane_b32 s{sT0}, v22""")
    a(f"""v_subrev_f32 v6, s{sT0}, v22
    v_mul_f32 v7, v6, v6""")
    for k in (4, 2, 1):
        dpp("add_f32", 6, 6, 6, f"row_ror:{k}")
        dpp("add_f32", 7, 7, 7, f"row_ror:{k}")
    for ctl, rm in (("row_bcast:15", "0xa"), ("row_bcast:31", "0xc")):
        dpp("add_f32", 6, 6, 6, ctl, rm=rm)
        dpp("add_f32", 7, 7, 7, ctl, rm=rm)
    a(f"""v_mul_f32 v28, 0x3d000000, v6
    v_fma_f32 v29, -v28, v6, v7
    v_add_f32 v28, s{sT0}, v28
    v_mov_b32 v4, 0
    s_mov_b32 exec_lo, 0
    s_mov_b32 exec_hi, 0x80000000""")
    pub_store(28, 4, sB)
    a("s_mov_b64 exec, -1")
    stamp(9)
    gemv(HD, 8, WD, "0x3", DD)
    a(f"v_bfi_b32 v{DD+3}, s{sFF}, v{vT+3}, v{DD+3}")
    pub_store(DD, 5, sC)
    stamp(10)
    a("L_kdone:")
    flush_stamps()
    a("s_endpgm")
    for s_ in slow:
        a(s_)
    a("L_end:")
    body = pad(a.text(), verbose=False)
    return single_file(body, 256, 320, LDS_BYTES, 168, sgpr=100)


if __name__ == "__main__":
    import json
    variants = json.loads(sys.argv[1]) if len(sys.argv) > 1 else {"k6": {}}
    for n, kw in variants.items():
        open(n + ".s", "w").write(gen(**kw))
        open(n + "_st.s", "w").write(gen(stamps=True, **kw))
```

```python
import sys
from gl import *
from hz import pad

EPOCH = 0
XF1 = 0x7c000
XF2 = 0x7e000
FL1 = 0x400
FL2 = 0x800
QP = 0x1000
ML = 0x11000
ST = 0x15000
GP = 0x120000
HP = 0x34000
FP = 0x44000
QB = 0x100000
OP = 0x80000
STAMPS = 0x200000
L_Q = 0
L_FLAG = 1024
L_ML = 1056
L_DUMMY = 1280
L_OW = 2304
L_RED = L_OW + 8192
L_STQ = L_RED + 4096
LDS_BYTES = L_RED + 4096 + 64
SPIN_LIMIT = 200000
LOG2E = 0x3fb8aa3b
SCALE = 0x3db504f3
EPS = 0x3727c5ac

sK, sV, sWQ, sWS, sX, sOUT = 8, 12, 16, 36, 40, 44
pWO, pW1, pW3, pW2 = 20, 24, 26, 28
sRHO, sWOF = 34, 35
sXO, sHA, sRN = 4, 5, 6
sSTR = 32
sG, sS, sW = 48, 49, 50
sTAG, sEP = 51, 52
sT0, sT1, sT2, sT3 = 53, 54, 55, 56
sCNT = 57
sFF, sHI = 58, 59
sROLE, sCOL = 60, 61
sA, sB, sC, sD = 62, 63, 64, 65
sKC, sCB = 66, 67
sXCC = 68
sL2E = 69
sSTAMP0 = 70


def gen(stamps=False, probe=None, win=8, win0=None, kalign=8, flags=True, qdelay=16, ack=False, tlb=False, dbg=False, b0pos=2, pre=0, qdual=True, na=4, qst='', qwarm=False, lst='', fearly=False, p1=3, n1=3, afirst=True, wpol='sc1', n2=0, wpre=3, wwait=False, tv=False, rho=True, wodiag=False, xfl=True, rdelay=3, fdelay=4, xpos=7, x2pos=12, gprobe=None, wlate=False, owarm='sc1', wmask=0xffffffff,
        l2warm=False, spr=(3, 2, 0, 0), lpath=True):
    a = Asm()
    slow = []
    if win0 is None:
        win0 = win
    diag = stamps or probe is not None or gprobe is not None

    inK = [False]

    def stamp(k):
        if stamps or (probe is not None and k in (0, probe)) or (gprobe is not None and k == 0):
            a(f"s_memrealtime s[{sSTAMP0+2*k}:{sSTAMP0+2*k+1}]")
        if gprobe is not None and inK[0] and k == gprobe[0] and inK[0] in gprobe[1]:
            l = a.label("L_gp")
            a(f"""s_and_b32 s98, s{sS}, 7
            s_lshl2_add_u32 s98, s98, s{sW}
            s_cmp_lg_u32 s98, 0
            s_cbranch_scc1 {l}
            s_memrealtime s[96:97]
            s_load_dwordx2 s[94:95], s[0:1], 80
            s_waitcnt lgkmcnt(0)
            s_not_b32 s93, s{sSTAMP0}
            {'s_mov_b32 s96, s%d' % sSTAMP0 if gprobe[2] else ''}
            s_atomic_umax s96, s[94:95], 0
            s_atomic_umax s93, s[94:95], 64
            {l}:""")

    def flush_stamps():
        if not stamps:
            return
        a(f"""s_waitcnt lgkmcnt(0)
        s_mov_b64 exec, 1
        s_lshl_b32 s{sA}, s2, 3
        s_add_u32 s{sA}, s{sA}, s3
        s_lshl_b32 s{sA}, s{sA}, 6
        s_add_u32 s{sA}, s{sA}, {STAMPS}
        v_mov_b32 v1, 0""")
        for k in range(0, 16, 4):
            for j in range(4):
                a(f"v_mov_b32 v{4+j}, s{sSTAMP0+2*(k+j) if k + j < 15 else sCNT}")
            a(f"buffer_store_dwordx4 v[4:7], v1, s[{sWS}:{sWS+3}], s{sA} offen offset:{k*4}")
        a(f"""s_cmp_lg_u32 s3, 4
        s_cbranch_scc1 L_nq
        s_sub_u32 s{sA}, s{sA}, 256
        v_mov_b32 v2, {L_STQ}""")
        for k in range(4):
            a(f"ds_read_b128 v[4:7], v2 offset:{16*k}\ns_waitcnt lgkmcnt(0)\nbuffer_store_dwordx4 v[4:7], v1, s[{sWS}:{sWS+3}], s{sA} offen offset:{k*16}")
        a("L_nq:\ns_waitcnt vmcnt(0)")

    def epoch_to_tag():
        a(f"""s_and_b32 s{sT0}, s{sEP}, 0xff
        s_add_u32 s{sTAG}, s{sT0}, 1
        s_and_b32 s{sTAG}, s{sTAG}, 0xff""")
        for i in (1, 2, 3):
            a(f"""s_bfe_u32 s{sT1}, s{sEP}, {hex(0x80000 | (8*i))}
            s_add_u32 s{sT1}, s{sT1}, 1
            s_and_b32 s{sT1}, s{sT1}, 0xff
            s_cmp_eq_u32 s{sT1}, s{sT0}
            s_addc_u32 s{sT1}, s{sT1}, 0
            s_and_b32 s{sT1}, s{sT1}, 0xff
            s_lshl_b32 s{sT1}, s{sT1}, {8*i}
            s_or_b32 s{sTAG}, s{sTAG}, s{sT1}""")

    def round_bf16(dst, src):
        a(f"v_cvt_pk_bf16_f32 v{dst}, {src}, {src}")
        a(f"v_and_b32 v{dst}, s{sHI}, v{dst}")

    def dpp(op, d, s0, s1, ctl, rm="0xf", bm="0xf"):
        a(f"v_{op}_dpp v{d}, v{s0}{'' if s1 is None else ', v%d' % s1} {ctl} row_mask:{rm} bank_mask:{bm}")

    def wave_red(v, sdst, op="add", steps=(8, 4, 2, 1)):
        for k in steps:
            dpp(op + "_f32", v, v, v, f"row_ror:{k}")
        dpp(op + "_f32", v, v, v, "row_bcast:15", rm="0xa")
        dpp(op + "_f32", v, v, v, "row_bcast:31", rm="0xc")
        a(f"v_readlane_b32 s{sdst}, v{v}, 63")

    def poll_tail(lab, go):
        a(f"""s_cbranch_vccz {go}
        s_add_u32 s{sCNT}, s{sCNT}, 1
        s_cmp_lt_u32 s{sCNT}, {SPIN_LIMIT}
        s_cbranch_scc1 {lab}
        {go}:""")

    def xreduce4(r0):
        a(f"""v_permlane32_swap_b32 v{r0}, v{r0+1}
        v_permlane32_swap_b32 v{r0+2}, v{r0+3}
        v_add_f32 v{r0}, v{r0}, v{r0+1}
        v_add_f32 v{r0+2}, v{r0+2}, v{r0+3}
        v_permlane16_swap_b32 v{r0}, v{r0+2}
        v_add_f32 v{r0}, v{r0}, v{r0+2}""")

    def pub_store(data, voff, soff, n=4):
        ins = f"buffer_store_dwordx4 v[{data}:{data+3}]" if n == 4 else f"buffer_store_dword v{data}"
        ins += f", v{voff}, s[{sWS}:{sWS+3}], s{soff} offen"
        if not lpath:
            a(ins + " sc1")
            return
        l1 = a.label("L_wt"); l2 = a.label("L_wb")
        a(f"""s_cmp_eq_u32 s{sCOL}, 1
        s_cbranch_scc0 {l1}
        {ins} {lst}
        {l2}:""")
        slow.append(f"{l1}:\n{ins} sc1\ns_branch {l2}")

    def build_masks(vM):
        a(f"""v_and_b32 v7, 1, v2
        v_lshlrev_b32 v7, 4, v7
        v_mov_b32 v13, 0xffff
        v_lshlrev_b32 v13, v7, v13
        v_bfe_u32 v7, v2, 1, 2""")
        for i in range(4):
            a(f"v_cmp_eq_u32 vcc, {i}, v7")
            a(f"v_cndmask_b32 v{vM+i}, 0, v13, vcc")

    def flag_poll(name, voff, soff, tmp):
        if not flags:
            return
        a(f"""{name}:
        buffer_load_dword v{tmp}, v{voff}, s[{sWS}:{sWS+3}], s{soff} offen sc1
        s_waitcnt vmcnt(0)
        v_cmp_ne_u32 vcc, s{sTAG}, v{tmp}""")
        poll_tail(name, name + "_go")

    def sum4(r):
        a(f"""s_waitcnt lgkmcnt(2)
        v_pk_add_f32 v[{r}:{r+1}], v[{r}:{r+1}], v[{r+4}:{r+5}]
        v_pk_add_f32 v[{r+2}:{r+3}], v[{r+2}:{r+3}], v[{r+6}:{r+7}]
        s_waitcnt lgkmcnt(0)
        v_pk_add_f32 v[{r+8}:{r+9}], v[{r+8}:{r+9}], v[{r+12}:{r+13}]
        v_pk_add_f32 v[{r+10}:{r+11}], v[{r+10}:{r+11}], v[{r+14}:{r+15}]
        v_pk_add_f32 v[{r}:{r+1}], v[{r}:{r+1}], v[{r+8}:{r+9}]
        v_pk_add_f32 v[{r+2}:{r+3}], v[{r+2}:{r+3}], v[{r+10}:{r+11}]""")

    def tagcheck(acc, regs, tags, mask=True):
        a(f"v_xor_b32 v{acc}, v{regs[0]}, v{tags[0]}")
        for r, t in zip(regs[1:], tags[1:]):
            a(f"v_bitop3_b32 v{acc}, v{acc}, v{r}, v{t} bitop3:0xf6")
        a(f"""v_and_b32 v{acc}, s{sFF}, v{acc}
        v_cmp_ne_u32 vcc, 0, v{acc}""")

    vXS, vXL, vWo = 4, 5, 6
    X, XS, WQ = 16, 20, 64
    stamp(0)
    a(f"""s_load_dwordx2 s[{sX}:{sX+1}], s[0:1], 0
    s_load_dwordx2 s[{sWQ}:{sWQ+1}], s[0:1], 24
    s_load_dwordx4 s[{sK}:{sK+3}], s[0:1], 8
    s_load_dwordx2 s[{sWS}:{sWS+1}], s[0:1], 88
    v_readfirstlane_b32 s3, v0
    s_cmpk_ge_u32 s2, 256
    s_cbranch_scc1 L_end
    s_lshr_b32 s3, s3, 6
    s_cbranch_scc0 L_q
    s_cmp_lg_u32 s3, 4
    s_cbranch_scc1 L_kreg
    s_cmp_ge_u32 s2, 16
    s_cbranch_scc1 L_100
    s_getpc_b64 s[{sC}:{sD}]
    L_pc:
    v_lshlrev_b32 v7, 7, v0
    v_add_u32 v7, 0xffff8000, v7
    global_load_dword v140, v7, s[{sC}:{sD}]
    v_add_u32 v7, 0x2000, v7
    v_min_u32 v7, L_end-L_pc, v7
    global_load_dword v140, v7, s[{sC}:{sD}]
    s_branch L_100
    L_q:
    s_mov_b32 s{sX+3}, 0x20000
    s_movk_i32 s{sX+2}, 1024
    s_mov_b32 s{sWQ+3}, s{sX+3}
    s_lshl_b32 s{sWQ+2}, 1, 22
    s_bfe_u32 s{sKC}, s2, 0x20003
    s_lshr_b32 s{sCB}, s2, 5
    s_and_b32 s{sG}, s2, 7
    v_lshlrev_b32 v{vXS}, 4, v0
    v_lshrrev_b32 v{vXL}, 3, v0
    v_lshlrev_b32 v{vWo}, 17, v{vXL}
    v_and_b32 v7, 7, v0
    v_lshl_add_u32 v{vWo}, v7, 4, v{vWo}
    v_lshlrev_b32 v{vXL}, 5, v{vXL}
    s_lshl_b32 s{sA}, s{sKC}, 8
    s_lshl_b32 s{sB}, s{sKC}, 10
    s_add_u32 s{sB}, s{sB}, s{sG}
    s_lshl3_add_u32 s{sB}, s{sB}, s{sCB}
    s_lshl_b32 s{sB}, s{sB}, 7
    s_waitcnt lgkmcnt(0)
    buffer_load_dwordx4 v[{X}:{X+3}], v{vXS}, s[{sX}:{sX+3}], 0 offen
    buffer_load_dwordx4 v[{XS}:{XS+3}], v{vXL}, s[{sX}:{sX+3}], s{sA} offen
    buffer_load_dwordx4 v[{XS+4}:{XS+7}], v{vXL}, s[{sX}:{sX+3}], s{sA} offen offset:16""")
    nfirst = 0 if diag else 1
    for t in range(16):
        if t == nfirst:
            a(f"""s_branch L_q2
            .p2align 8
            L_100:
            s_branch L_kreg
            L_q2:
            s_setprio 3
            s_movk_i32 s{sD}, 0x2000""")
        if t > 0:
            a(f"s_add_u32 s{sB}, s{sB}, s{sD}")
        a(f"buffer_load_dwordx4 v[{WQ+4*t}:{WQ+4*t+3}], v{vWo}, s[{sWQ}:{sWQ+3}], s{sB} offen nt")
    if b0pos == 0: a("s_barrier")

    vM, vT3 = 8, 12
    U, vA, D, PP = 28, 36, 44, 48
    stamp(1)
    a(f"""s_load_dword s{sEP}, s[{sWS}:{sWS+1}], {EPOCH}
    s_mov_b32 s{sWS+3}, s{sX+3}
    s_lshl_b32 s{sWS+2}, 1, 28
    s_lshr_b32 s{sS}, s2, 3
    v_and_b32 v2, 15, v0
    v_lshrrev_b32 v3, 4, v0
    s_mov_b32 s{sFF}, 0xff
    s_mov_b32 s{sHI}, 0xffff0000
    s_mov_b32 s{sCNT}, 0""")
    build_masks(vM)
    a(f"""s_getreg_b32 s{sXCC}, hwreg(HW_REG_XCC_ID)
    s_and_b32 s{sXCC}, s{sXCC}, 0xff
    v_and_b32 v7, 7, v0
    v_lshl_add_u32 v7, v3, 3, v7
    v_lshlrev_b32 v7, 4, v7
    s_lshl_b32 s{sA}, s{sG}, 13
    s_add_u32 s{sA}, s{sA}, {QP}
    s_lshl_b32 s{sB}, s{sKC}, 11
    s_add_u32 s{sB}, s{sB}, s{sA}
    s_lshl_b32 s{sC}, s{sCB}, 8
    s_add_u32 s{sB}, s{sB}, s{sC}
    s_add_u32 s{sC}, s{sA}, 4096
    v_mov_b32 v13, s{sXCC}""")
    if qdual and qwarm:
        a(f"""v_lshlrev_b32 v14, 7, v0
        s_mov_b64 exec, 3
        buffer_load_dword v15, v14, s[{sWS}:{sWS+3}], s{sB} offen sc1
        s_mov_b64 exec, -1""")
    nx = 1 if (qdual and qwarm) else 0
    a(f"s_waitcnt vmcnt({18+nx})")
    if b0pos == 1: a("s_barrier")
    stamp(2)
    for i in range(4):
        a(f"v_lshlrev_b32 v{U+2*i}, 16, v{X+i}")
        a(f"v_and_b32 v{U+2*i+1}, s{sHI}, v{X+i}")
    a(f"""v_pk_add_f32 v[{vA}:{vA+1}], v[{U}:{U+1}], v[{U+2}:{U+3}]
    v_pk_add_f32 v[{vA+2}:{vA+3}], v[{U+4}:{U+5}], v[{U+6}:{U+7}]
    v_pk_add_f32 v[{vA}:{vA+1}], v[{vA}:{vA+1}], v[{vA+2}:{vA+3}]
    v_add_f32 v{vA}, v{vA}, v{vA+1}""")
    wave_red(vA, sT0)
    a(f"""v_mov_b32 v14, 0x3b000000
    v_mul_f32 v14, s{sT0}, v14""")
    for i in range(4):
        a(f"v_pk_add_f32 v[{U+2*i}:{U+2*i+1}], v[{U+2*i}:{U+2*i+1}], v[14:15] op_sel_hi:[1,0] neg_lo:[0,1] neg_hi:[0,1]")
    a(f"v_pk_mul_f32 v[{vA}:{vA+1}], v[{U}:{U+1}], v[{U}:{U+1}]")
    for i in range(1, 4):
        a(f"v_pk_fma_f32 v[{vA}:{vA+1}], v[{U+2*i}:{U+2*i+1}], v[{U+2*i}:{U+2*i+1}], v[{vA}:{vA+1}]")
    a(f"v_add_f32 v{vA}, v{vA}, v{vA+1}")
    wave_red(vA, sT0)
    round_bf16(14, "v14")
    a(f"""v_mov_b32 v40, 0x3b000000
    v_mul_f32 v40, s{sT0}, v40""")
    round_bf16(40, "v40")
    a(f"v_add_f32 v40, {hex(EPS)}, v40")
    round_bf16(40, "v40")
    a(f"v_sqrt_f32 v40, v40")
    round_bf16(40, "v40")
    a(f"v_rcp_f32 v40, v40")
    a(f"s_waitcnt vmcnt({16+nx})")
    for j in range(8):
        u = U + 2 * (j % 4)
        a(f"""v_lshlrev_b32 v{u}, 16, v{XS+j}
        v_and_b32 v{u+1}, s{sHI}, v{XS+j}
        v_pk_add_f32 v[{u}:{u+1}], v[{u}:{u+1}], v[14:15] op_sel_hi:[1,0] neg_lo:[0,1] neg_hi:[0,1]
        v_cvt_pk_bf16_f32 v{u+1}, v{u}, v{u+1}
        v_lshlrev_b32 v{u}, 16, v{u+1}
        v_and_b32 v{u+1}, s{sHI}, v{u+1}
        v_pk_mul_f32 v[{u}:{u+1}], v[{u}:{u+1}], v[40:41] op_sel_hi:[1,0]
        v_cvt_pk_bf16_f32 v{PP+2*j}, v{u}, v{u}
        v_cvt_pk_bf16_f32 v{PP+2*j+1}, v{u+1}, v{u+1}""")
    if b0pos == 2: a("s_barrier")
    stamp(3)
    a(f"s_waitcnt lgkmcnt(0)")
    epoch_to_tag()
    a(f"""v_lshlrev_b32 v14, 3, v0
    v_add_u32 v14, 24, v14
    v_alignbit_b32 v{vT3}, s{sTAG}, s{sTAG}, v14""")
    stamp(8)

    def selA(t):
        s = vA + 4 * (t & 1)
        for i in range(4):
            a(f"v_and_b32 v{s+i}, v{PP+t}, v{vM+i}")
    selA(0)
    for t in range(16):
        if t < 15:
            selA(t + 1)
        a(f"s_waitcnt vmcnt({15-t+nx})")
        if b0pos == 3 + t: a("s_barrier")
        s = vA + 4 * (t & 1)
        c = "0" if t == 0 else f"v[{D}:{D+3}]"
        a(f"v_mfma_f32_16x16x32_bf16 v[{D}:{D+3}], v[{s}:{s+3}], v[{WQ+4*t}:{WQ+4*t+3}], {c}")
    for i in range(4):
        a(f"v_mov_b32 v{U+i}, v{D+i}")
    for i in range(4):
        a(f"v_permlane32_swap_b32 v{D+i}, v{U+i}")
    for i in range(4):
        dpp("add_f32", D + i, U + i, D + i, "row_ror:8")
    a(f"""v_bfi_b32 v{D+2}, s{sFF}, v13, v{D+2}
    v_bfi_b32 v{D+3}, s{sFF}, v{vT3}, v{D+3}
    s_mov_b64 exec, 0x00ff00ff
    """)
    if qdual:
        a(f"""buffer_store_dwordx4 v[{D}:{D+3}], v7, s[{sWS}:{sWS+3}], s{sB} offen {qst}
        s_add_u32 s{sB}, s{sB}, {QB - QP}""")
    a(f"""buffer_store_dwordx4 v[{D}:{D+3}], v7, s[{sWS}:{sWS+3}], s{sB} offen sc1
    s_mov_b64 exec, -1""")
    if p1: a("s_barrier")
    stamp(4)
    a(f"""v_and_b32 v14, 8, v0
    v_add_u32 v7, v7, v14""")
    if l2warm:
        a(f"""s_lshl_b32 s{sT0}, s{sG}, 16
        s_lshl_b32 s{sT1}, s{sS}, 11
        s_add_u32 s{sT0}, s{sT0}, s{sT1}
        s_add_u32 s{sT0}, s{sT0}, {OP}
        v_lshlrev_b32 v15, 7, v0
        v_add_u32 v14, s{sT0}, v15
        s_lshr_b32 s{sT0}, s{sS}, 3
        s_lshl3_add_u32 s{sT0}, s{sT0}, s{sG}
        s_min_u32 s{sT0}, s{sT0}, 27
        s_and_b32 s{sT2}, s{sS}, 7
        s_lshl3_add_u32 s{sT1}, s{sT0}, s{sT2}
        s_lshl_b32 s{sT1}, s{sT1}, 11
        s_add_u32 s{sT1}, s{sT1}, {GP - 16*128}
        v_add_u32 v15, s{sT1}, v15
        v_cmp_lt_u32 vcc, 15, v0
        v_cndmask_b32 v14, v14, v15, vcc
        s_and_b32 s{sT1}, s{sS}, 15
        s_lshl4_add_u32 s{sT1}, s{sG}, s{sT1}
        s_lshl_b32 s{sT1}, s{sT1}, 7
        s_add_u32 s{sT1}, s{sT1}, {ML}
        v_writelane_b32 v14, s{sT1}, 32
        s_and_b32 s{sT2}, s{sS}, 1
        s_lshl1_add_u32 s{sT1}, s{sT0}, s{sT2}
        s_lshl_b32 s{sT1}, s{sT1}, 7
        s_add_u32 s{sT1}, s{sT1}, {ST}
        v_writelane_b32 v14, s{sT1}, 33
        s_lshl1_add_u32 s{sT1}, s{sG}, s{sT2}
        s_lshl_b32 s{sT1}, s{sT1}, 7
        s_add_u32 s{sT1}, s{sT1}, {FL2}
        v_writelane_b32 v14, s{sT1}, 34""")
    def warmload():
        if l2warm:
            a(f"""s_mov_b32 exec_hi, 7
            s_mov_b32 exec_lo, {hex(wmask)}
            buffer_load_dword v17, v14, s[{sWS}:{sWS+3}], 0 offen {wpol}
            s_mov_b64 exec, -1""")
    if not wlate:
        warmload()
    if ack:
        a("s_waitcnt vmcnt(0)")
    if qdelay:
        a(f"s_sleep {qdelay}")
    if qdual and not afirst:
        a(f"""s_add_u32 s{sA}, s{sA}, {QB - QP}
        s_add_u32 s{sC}, s{sC}, {QB - QP}""")
    stamp(7)
    G = WQ

    def qloads():
        for kc in range(4):
            for h in range(2):
                o = kc * 2048 + h * 1024
                r = G + 4 * (kc * 2 + h)
                a(f"buffer_load_dwordx4 v[{r}:{r+3}], v{vXS}, s[{sWS}:{sWS+3}], s{sA if o < 4096 else sC} offen offset:{o % 4096} sc1")
    if n2:
        qloads()
        a("s_barrier")
        if wlate:
            a("v_mov_b32 v16, v14")
            warmload()
            a("s_waitcnt vmcnt(1)\ns_branch L_qchk2")
        else:
            a("s_branch L_qchk")
    a("L_qpoll:")
    qloads()
    a("L_qchk:\ns_waitcnt vmcnt(0)\nL_qchk2:")
    tagcheck(14, [G + 4 * k + 3 for k in range(8)], [vT3] * 8)
    if qdual:
        a(f"""s_cbranch_vccz L_qgo
        s_add_u32 s{sCNT}, s{sCNT}, 1
        s_cmp_eq_u32 s{sCNT}, 1
        s_cselect_b32 s{sT0}, {0 if afirst else QP - QB}, 0
        s_cmp_eq_u32 s{sCNT}, {na + 1}
        s_cselect_b32 s{sT0}, {QB - QP}, s{sT0}
        s_add_u32 s{sA}, s{sA}, s{sT0}
        s_add_u32 s{sC}, s{sC}, s{sT0}
        s_cmp_lt_u32 s{sCNT}, {SPIN_LIMIT}
        s_cbranch_scc1 L_qpoll
        L_qgo:""")
    else:
        poll_tail("L_qpoll", "L_qgo")
    stamp(5)
    for h in range(2):
        r = G + 4 * h
        a(f"v_xor_b32 v15, v{r+2}, v13" if h == 0 else f"v_bitop3_b32 v15, v15, v{r+2}, v13 bitop3:0xf6")
        for kc in range(1, 4):
            q = G + 4 * (kc * 2 + h)
            a(f"v_bitop3_b32 v15, v15, v{q+2}, v13 bitop3:0xf6")
            a(f"v_pk_add_f32 v[{r}:{r+1}], v[{r}:{r+1}], v[{q}:{q+1}]")
            a(f"v_pk_add_f32 v[{r+2}:{r+3}], v[{r+2}:{r+3}], v[{q+2}:{q+3}]")
        a(f"v_cvt_pk_bf16_f32 v{r}, v{r}, v{r+1}")
        a(f"v_cvt_pk_bf16_f32 v{r+1}, v{r+2}, v{r+3}")
        a(f"ds_write_b64 v7, v[{r}:{r+1}] offset:{L_Q + 512*h}")
    a(f"""v_and_b32 v15, s{sFF}, v15
    v_cmp_ne_u32 vcc, 0, v15
    s_cmp_eq_u64 vcc, 0
    s_cselect_b32 s{sA}, 1, 0
    v_mov_b32 v14, s{sA}
    v_mov_b32 v15, {L_FLAG}
    ds_write_b32 v15, v14""")
    if stamps:
        stamp(6)
        a(f"s_waitcnt lgkmcnt(0)\nv_mov_b32 v15, {L_STQ}")
        for k in (0, 1, 3, 4, 5, 7, 15):
            a(f"v_mov_b32 v14, s{sSTAMP0+2*k if k < 15 else sCNT}\nds_write_b32 v15, v14 offset:{4*k}")
    a(f"""s_waitcnt lgkmcnt(0)
    s_barrier
    s_endpgm""")

    inK[0] = 'K'
    vKo, vVo = 4, 5
    KD, VD, WD = 32, 64, 96
    W2D = WD + 32
    vM, vPM, vT, vWo, vI = 8, 12, 24, 14, 15
    vQa, vOa, vMa, vMr = 16, 17, 18, 23
    vWA = 142
    a(f""".p2align {kalign}
    L_kreg:
    s_load_dwordx2 s[{pWO}:{pWO+1}], s[0:1], 32
    s_load_dwordx4 s[{pW1}:{pW1+3}], s[0:1], 48
    s_load_dwordx4 s[{pW2}:{pW2+3}], s[0:1], 64
    v_and_b32 v0, 63, v0
    s_and_b32 s{sG}, s2, 7
    s_lshr_b32 s{sS}, s2, 3
    s_sub_u32 s{sW}, s3, 1
    v_and_b32 v2, 15, v0
    v_lshrrev_b32 v3, 4, v0
    v_and_b32 v6, 7, v2
    v_lshlrev_b32 v{vKo}, 8, v6
    v_lshrrev_b32 v6, 3, v2
    v_lshl_add_u32 v{vKo}, v6, 6, v{vKo}
    v_lshl_add_u32 v{vKo}, v3, 4, v{vKo}
    v_lshlrev_b32 v{vVo}, 10, v3
    v_lshl_add_u32 v{vVo}, v2, 4, v{vVo}
    s_lshl_b32 s{sA}, s{sG}, 23
    s_lshl_b32 s{sB}, s{sS}, 12
    s_add_u32 s{sA}, s{sA}, s{sB}
    s_lshl_b32 s{sB}, s{sW}, 17
    s_add_u32 s{sA}, s{sA}, s{sB}
    s_add_u32 s{sA}, s{sA}, {28672*256}
    s_add_u32 s{sB}, s{sA}, 0x80000
    s_mov_b32 s{sV+3}, 0x20000
    s_lshl_b32 s{sV+2}, 1, 26
    s_waitcnt lgkmcnt(0)
    s_load_dword s{sEP}, s[{sWS}:{sWS+1}], {EPOCH}
    s_mov_b32 s{sV}, s{sK+2}
    s_mov_b32 s{sV+1}, s{sK+3}
    s_mov_b32 s{sK+2}, s{sV+2}
    s_mov_b32 s{sK+3}, s{sV+3}
    s_mov_b32 s{sWS+3}, s{sV+3}
    s_lshl_b32 s{sWS+2}, 1, 28""")
    if tlb:
        a(f"""s_load_dword s{sT0}, s[{sV}:{sV+1}], s{sA}
        s_lshl_b32 s{sC}, s{sG}, 19
        s_load_dword s{sT0}, s[{pWO}:{pWO+1}], s{sC}
        s_load_dword s{sT0}, s[{pW1}:{pW1+1}], 0
        s_load_dword s{sT0}, s[{pW3}:{pW3+1}], 0
        s_load_dword s{sT0}, s[{pW2}:{pW2+1}], 0
        s_load_dword s{sT0}, s[{pW2+2}:{pW2+3}], 0""")

    def kvload(n):
        if n < 8:
            tau, eta, lam = n >> 2, (n >> 1) & 1, n & 1
            r = KD + n * 4
            a(f"buffer_load_dwordx4 v[{r}:{r+3}], v{vKo}, s[{sK}:{sK+3}], s{sA+tau} offen offset:{eta*2048+lam*128} nt")
        else:
            k = n - 8
            tau, i = divmod(k, 4)
            r = VD + k * 4
            a(f"buffer_load_dwordx4 v[{r}:{r+3}], v{vVo}, s[{sV}:{sV+3}], s{sA+tau} offen offset:{i*256} nt")
    if b0pos == 0:
        for n in range(win0):
            if n == pre: a("s_barrier")
            kvload(n)
        if not dbg: stamp(1)
    else:
        for n in range(pre):
            kvload(n)
    a(f"""s_mov_b32 s{sX+3}, s{sV+3}
    s_movk_i32 s{sX+2}, 1024
    s_mov_b32 s{sOUT}, s{pW2+2}
    s_mov_b32 s{sOUT+1}, s{pW2+3}
    s_movk_i32 s{sOUT+2}, 1024
    s_mov_b32 s{sOUT+3}, s{sV+3}
    s_mov_b32 s{sFF}, 0xff
    s_mov_b32 s{sHI}, 0xffff0000
    s_mov_b32 s{sCNT}, 0
    s_mov_b32 s{sL2E}, {hex(LOG2E)}""")
    build_masks(vM)
    a(f"""v_or_b32 v{vPM}, v{vM}, v{vM+2}
    v_or_b32 v{vPM+1}, v{vM+1}, v{vM+3}
    v_cmp_gt_u32 vcc, 8, v2""")
    for i in range(4):
        a(f"v_cndmask_b32 v{vM+i}, 0, v{vM+i}, vcc")
    a(f"""v_and_b32 v{vI}, 1, v3
    v_lshlrev_b32 v{vI}, 1, v{vI}
    v_lshrrev_b32 v6, 1, v3
    v_add_u32 v{vI}, v{vI}, v6
    s_and_b32 s{sKC}, s{sS}, 3
    s_lshr_b32 s{sC}, s{sS}, 2
    s_lshl2_add_u32 s{sT3}, s{sG}, s{sC}   ; H (O role)
    s_sub_u32 s{sCB}, s{sC}, 4
    s_lshl_b32 s{sCB}, s{sCB}, 3
    s_add_u32 s{sCB}, s{sCB}, s{sG}
    s_cmp_lt_u32 s{sS}, 16
    s_cselect_b32 s{sROLE}, 0, 1
    s_cselect_b32 s{sCB}, 0, s{sCB}
    s_cmp_ge_u32 s{sCB}, 28
    s_cselect_b32 s{sROLE}, 2, s{sROLE}
    s_lshl2_add_u32 s{sT2}, s{sCB}, s{sKC} ; f (F role)
    v_lshrrev_b32 v6, 2, v2
    v_lshlrev_b32 v{vQa}, 8, v6
    v_and_b32 v7, 2, v2
    v_lshl_add_u32 v{vQa}, v7, 5, v{vQa}
    v_lshl_add_u32 v{vQa}, v3, 4, v{vQa}
    v_lshlrev_b32 v{vOa}, 9, v3
    v_lshl_add_u32 v{vOa}, v2, 5, v{vOa}
    s_lshl_b32 s{sC}, s{sW}, 11
    s_add_u32 s{sC}, s{sC}, {L_OW}
    v_add_u32 v{vOa}, s{sC}, v{vOa}
    v_lshlrev_b32 v{vMr}, 4, v6
    v_add_u32 v{vMr}, {L_ML}, v{vMr}
    s_lshl_b32 s{sC}, s{sW}, 2
    v_add_u32 v{vMa}, s{sC}, v{vMr}
    v_lshlrev_b32 v6, 2, v0
    v_add_u32 v6, {L_DUMMY}, v6
    v_and_b32 v7, 0x33, v0
    v_cmp_eq_u32 vcc, 0, v7
    v_cndmask_b32 v{vMa}, v6, v{vMa}, vcc
    v_lshlrev_b32 v{vWo}, 10, v{vI}
    v_lshl_add_u32 v{vWo}, v2, 4, v{vWo}  ; i(g4)*1024 + c*16
    v_lshlrev_b32 v19, 4, v0""")
    if p1:
        a("s_barrier")
        for n in range(n1):
            if n >= p1:
                a(f"s_waitcnt vmcnt({p1 - 1})")
            kvload(n)
        a("s_barrier")
        if n2:
            for n in range(n1, n1 + n2):
                kvload(n)
            a("s_barrier")
        if not dbg: stamp(1)
        for n in range(n1 + n2, 16):
            if n >= win:
                a(f"s_waitcnt vmcnt({win - 1})")
            kvload(n)
    else:
        if b0pos != 0:
            a("s_barrier")
            for n in range(pre, win0):
                kvload(n)
            if not dbg: stamp(1)
        for n in range(win0, 16):
            a(f"s_waitcnt vmcnt({min(win, n) - 1})")
            kvload(n)
    a("s_waitcnt lgkmcnt(0)")
    epoch_to_tag()
    a(f"v_lshlrev_b32 v6, 3, v0")
    for j in range(4):
        a(f"v_alignbit_b32 v{vT+j}, s{sTAG}, s{sTAG}, v6")
        if j < 3:
            a(f"v_add_u32 v6, 8, v6")
    a(f"""s_lshl1_add_u32 s{sRHO}, s{sW}, s{sS}
    s_and_b32 s{sRHO}, s{sRHO}, {7 if rho else 0}
    s_lshl2_add_u32 s{sWOF}, s{sT3}, s{sW}
    s_lshl3_add_u32 s{sWOF}, s{sWOF}, s{sRHO}
    s_lshl4_add_u32 s{sWOF}, s{sWOF}, s{sKC}
    s_lshl_b32 s{sWOF}, s{sWOF}, 8
    s_cmp_eq_u32 s{sROLE}, 0
    s_cselect_b32 s{pWO+2}, 0x400000, 0
    s_mov_b32 s{pWO+3}, 0x20000
    s_mov_b32 s{sSTR+1}, 0""")
    WAF = f"""s_lshl_b32 s{sD}, s{sKC}, 7
    s_lshl_b32 s{sC}, s{sW}, 5
    s_add_u32 s{sD}, s{sD}, s{sC}
    s_mul_i32 s{sD}, s{sD}, 3584
    s_lshl_b32 s{sC}, s{sCB}, 7
    s_add_u32 s{sD}, s{sD}, s{sC}
    s_movk_i32 s{sC}, 3584
    v_mul_u32_u24 v6, s{sC}, v{vI}
    v_and_b32 v20, 7, v0
    v_lshl_add_u32 v6, v20, 4, v6
    v_add_u32 v6, s{sD}, v6
    v_lshl_add_u64 v[{vWA}:{vWA+1}], v[6:7], 0, s[{pW1}:{pW1+1}]
    v_lshl_add_u64 v[20:21], v[6:7], 0, s[{pW3}:{pW3+1}]
    v_cmp_gt_u32 vcc, 8, v2
    v_cndmask_b32 v{vWA}, v20, v{vWA}, vcc
    v_cndmask_b32 v{vWA+1}, v21, v{vWA+1}, vcc
    s_movk_i32 s{sSTR}, {4*3584}
"""
    a(f"""L_wad:
    s_lshl2_add_u32 s{sC}, s{sG}, s{sW}
    s_lshl_b32 s{sC}, s{sC}, 5
    s_add_u32 s{sC}, s{sC}, s{sS}
    s_lshl_b32 s{sA}, s{sC}, 9
    s_add_u32 s{sA}, s{sA}, {OP}
    s_lshl_b32 s{sB}, s{sC}, 4
    s_add_u32 s{sB}, s{sB}, {ML}
    s_lshl_b32 s{sC}, s{sW}, 4
    s_add_u32 s{sC}, s{sC}, {L_ML}
    v_mov_b32 v22, s{sC}
    s_lshl_b32 s{sC}, s{sW}, 9
    s_add_u32 s{sC}, s{sC}, {L_OW}
    v_lshl_add_u32 v1, v0, 4, s{sC}
    v_mov_b32 v6, {L_FLAG}
    v_mov_b32 v20, {hex(SCALE)}""")
    vMo_, vGo_, vTo_ = 136, 137, 138
    a(f"""v_lshrrev_b32 v6, 3, v0
    v_and_b32 v7, 3, v0
    v_lshl_add_u32 v{vMo_}, v6, 2, v7
    v_lshlrev_b32 v{vMo_}, 4, v{vMo_}
    v_and_b32 v7, 7, v0
    v_xor_b32 v7, s{sRHO}, v7
    v_lshlrev_b32 v{vGo_}, 11, v6
    v_lshl_add_u32 v{vGo_}, v7, 4, v{vGo_}
    v_lshlrev_b32 v7, 3, v7
    v_add_u32 v7, 24, v7
    v_alignbit_b32 v{vTo_}, s{sTAG}, s{sTAG}, v7""")
    a(f"v_mov_b32 v6, {L_FLAG}")
    wn = [0]

    def woloads(k):
        for _ in range(k):
            t = wn[0]
            a(f"buffer_load_dwordx4 v[{WD+4*t}:{WD+4*t+3}], v{vWo}, s[{pWO}:{pWO+3}], s{sWOF} offen nt")
            if t < 7:
                a(f"s_xor_b32 s{sWOF}, s{sWOF}, {hex((t ^ (t + 1)) << 12)}")
            wn[0] += 1

    def wloads(k):
        for _ in range(k):
            t = wn[0]
            a(f"global_load_dwordx4 v[{WD+4*t}:{WD+4*t+3}], v[{vWA}:{vWA+1}], off nt")
            if t < 7:
                a(f"v_lshl_add_u64 v[{vWA}:{vWA+1}], s[{sSTR}:{sSTR+1}], 0, v[{vWA}:{vWA+1}]")
            wn[0] += 1
    def rloads(k):
        if k == 0:
            return
        if not fearly:
            woloads(k)
            return
        n0 = wn[0]
        l1 = a.label("L_rf"); l2 = a.label("L_rd")
        a(f"s_cmp_eq_u32 s{sROLE}, 1\ns_cbranch_scc1 {l1}")
        woloads(k)
        a(f"s_branch {l2}\n{l1}:")
        wn[0] = n0
        wloads(k)
        a(f"{l2}:")
    nwm = 0
    if owarm is not None:
        nwm = 1
        a(f"""s_lshl2_add_u32 s{sC}, s{sT3}, s{sKC}
        s_lshl_b32 s{sD}, s{sC}, 12
        s_add_u32 s{sD}, s{sD}, {OP}
        s_lshl_b32 s{sT0}, s{sW}, 7
        s_add_u32 s{sD}, s{sD}, s{sT0}
        v_lshlrev_b32 v7, 9, v0
        v_add_u32 v7, s{sD}, v7
        s_lshl_b32 s{sC}, s{sC}, 7
        s_add_u32 s{sC}, s{sC}, {ML}
        v_writelane_b32 v7, s{sC}, 8
        s_cmp_eq_u32 s{sROLE}, 0
        s_cselect_b32 s{sC}, 0, 0x10000000
        s_mov_b64 exec, 0x1ff
        buffer_load_dword v139, v7, s[{sWS}:{sWS+3}], s{sC} offen {owarm}
        s_mov_b64 exec, -1""")
    if fearly:
        a(f"s_cmp_lg_u32 s{sROLE}, 1\ns_cbranch_scc1 L_nwaf\nv_mov_b32 v7, 0")
        a(WAF)
        a(f"v_mov_b32 v6, {L_FLAG}\nv_mov_b32 v20, {hex(SCALE)}\nL_nwaf:")
    if wwait:
        for _ in range(wpre):
            a(f"s_waitcnt vmcnt({win - 1})")
            rloads(1)
    else:
        rloads(wpre)
    if tv: a("s_waitcnt vmcnt(0)")
    if not dbg: stamp(2)
    a("s_barrier")
    stamp(3)
    B0, SD = 144, 152
    a(f"""ds_read_b128 v[{B0}:{B0+3}], v{vQa} offset:{L_Q}
    ds_read_b128 v[{B0+4}:{B0+7}], v{vQa} offset:{L_Q+128}
    ds_read_b32 v6, v6
    s_waitcnt vmcnt({8 + wpre + nwm})""")
    rloads(spr[0])
    a("s_waitcnt lgkmcnt(0)")
    for lam in range(2):
        for te in range(4):
            r = KD + (te * 2 + lam) * 4
            d = SD + te * 4
            c = "0" if lam == 0 else f"v[{d}:{d+3}]"
            a(f"v_mfma_f32_16x16x32_bf16 v[{d}:{d+3}], v[{r}:{r+3}], v[{B0+4*lam}:{B0+4*lam+3}], {c}")
    rloads(spr[1])
    a(f"v_readfirstlane_b32 s{sCOL}, v6")
    for tau in range(2):
        for i in range(4):
            a(f"v_permlane32_swap_b32 v{SD+8*tau+i}, v{SD+8*tau+4+i}")
    Sx = [SD + 8 * tau + i for tau in range(2) for i in range(4)]
    for s in Sx:
        dpp("add_f32", s, s + 4, s, "quad_perm:[2,3,2,3]")
    P2 = [Sx[0], Sx[2], Sx[4], Sx[6]]
    for s in P2: a(f"v_cvt_pk_bf16_f32 v{s+1}, v{s}, v{s+1}")
    for s in P2: a(f"v_lshlrev_b32 v{s}, 16, v{s+1}\nv_and_b32 v{s+1}, s{sHI}, v{s+1}")
    for s in P2: a(f"v_pk_mul_f32 v[{s}:{s+1}], v[{s}:{s+1}], v[20:21] op_sel_hi:[1,0]")
    for s in P2: a(f"v_cvt_pk_bf16_f32 v{s+1}, v{s}, v{s+1}")
    for s in P2: a(f"v_lshlrev_b32 v{s}, 16, v{s+1}\nv_and_b32 v{s+1}, s{sHI}, v{s+1}")
    a(f"""v_max3_f32 v28, v{Sx[0]}, v{Sx[1]}, v{Sx[2]}
    v_max3_f32 v29, v{Sx[3]}, v{Sx[4]}, v{Sx[5]}
    v_max3_f32 v28, v{Sx[6]}, v{Sx[7]}, v28
    v_max_f32 v28, v28, v29
    v_mov_b32 v29, v28
    v_permlane32_swap_b32 v28, v29
    v_max_f32 v28, v28, v29
    v_mov_b32 v29, v28
    v_permlane16_swap_b32 v28, v29
    v_max_f32 v28, v28, v29
    ds_write_b32 v{vMa}, v28""")
    a(f"""s_waitcnt lgkmcnt(0)
    s_barrier
    ds_read_b128 v[28:31], v{vMr}""")
    rloads(spr[2])
    a("s_waitcnt lgkmcnt(0)")
    if dbg: stamp(1)
    a(f"""    v_max3_f32 v28, v28, v29, v30
    v_max_f32 v28, v28, v31
    v_mul_f32 v20, s{sL2E}, v28""")
    for k in range(8):
        a(f"v_fma_f32 v{Sx[k]}, v{Sx[k]}, s{sL2E}, -v20")
    for k in range(8):
        a(f"v_exp_f32 v{Sx[k]}, v{Sx[k]}")
    a(f"""v_pk_add_f32 v[20:21], v[{Sx[0]}:{Sx[1]}], v[{Sx[2]}:{Sx[3]}]
    v_pk_add_f32 v[28:29], v[{Sx[4]}:{Sx[5]}], v[{Sx[6]}:{Sx[7]}]
    v_pk_add_f32 v[20:21], v[20:21], v[28:29]
    v_add_f32 v20, v20, v21
    v_mov_b32 v21, v20
    v_permlane32_swap_b32 v20, v21
    v_add_f32 v20, v20, v21
    v_mov_b32 v21, v20
    v_permlane16_swap_b32 v20, v21
    v_add_f32 v20, v20, v21
    ds_write_b32 v{vMa}, v20 offset:64""")
    XR = [SD + 4, SD + 6, SD + 12, SD + 14, B0, B0 + 2, B0 + 4, B0 + 6]
    for k in range(8):
        a(f"v_cvt_pk_bf16_f32 v{XR[k]+1}, v{Sx[k]}, v{Sx[k]}")
    for k in range(8):
        dpp("and_b32", XR[k], XR[k] + 1, vPM, "quad_perm:[0,0,0,0]")
    for k in range(8):
        dpp("and_b32", XR[k] + 1, XR[k] + 1, vPM + 1, "quad_perm:[0,0,0,0]")
    a(f"""v_mov_b32 v30, s{sTAG}
    v_mov_b32 v31, s{sTAG}""")
    if dbg: stamp(2)
    a(f"""s_waitcnt lgkmcnt(0)
    s_barrier""")
    if dbg: stamp(13)
    a(f"""ds_read_b128 v[40:43], v22
    ds_read_b128 v[44:47], v22 offset:64""")
    rloads(spr[3])
    assert wn[0] == 8
    a(f"""s_mov_b64 exec, 1
    s_waitcnt lgkmcnt(0)
    v_max3_f32 v28, v40, v41, v42
    v_max_f32 v28, v28, v43
    v_pk_add_f32 v[44:45], v[44:45], v[46:47]
    v_add_f32 v29, v44, v45""")
    if dbg: stamp(14)
    pub_store(28, 19, sB)
    a("s_mov_b64 exec, -1")
    stamp(4)
    OA = KD
    for k in range(8):
        a(f"s_waitcnt vmcnt({7 - k + 9 + nwm})")
        r = VD + k * 4
        for u in range(2):
            d = OA + 4 * u
            c = "0" if k == 0 else f"v[{d}:{d+3}]"
            a(f"v_mfma_f32_16x16x16_bf16 v[{d}:{d+3}], v[{XR[k]}:{XR[k]+1}], v[{r+2*u}:{r+2*u+1}], {c}")
    stamp(5)
    if wodiag:
        a("s_waitcnt vmcnt(1)")
        stamp(14)
    a(f"""ds_write_b128 v{vOa}, v[{OA}:{OA+3}]
    ds_write_b128 v{vOa}, v[{OA+4}:{OA+7}] offset:16
    s_waitcnt lgkmcnt(0)
    s_barrier
    s_mov_b32 exec_hi, 0""")
    for w in range(4):
        a(f"ds_read_b128 v[{48+4*w}:{48+4*w+3}], v1 offset:{2048*w}")
    sum4(48)
    a(f"v_bfi_b32 v51, s{sFF}, v{vT+3}, v51")
    pub_store(48, 19, sA)
    a("s_mov_b32 exec_hi, -1")
    stamp(6)
    a(f"""s_cmp_lg_u32 s{sROLE}, 0
    s_cbranch_scc1 L_frole
    s_lshl_b32 s{sA}, s{sT3}, 14
    s_add_u32 s{sA}, s{sA}, {OP}
    s_lshl_b32 s{sB}, s{sW}, 7
    s_add_u32 s{sA}, s{sA}, s{sB}
    s_lshl_b32 s{sB}, s{sT3}, 9
    s_add_u32 s{sB}, s{sB}, {ML}""")

    inK[0] = 'O'
    GD, GE = 32, 64
    vGo, vMo = vGo_, vMo_
    AS, DD, RR = 84, 92, 80

    def gemv(src, n, wbase, bank, dreg, bc=lambda t: t, after=None):
        def sel(t):
            s = AS + 4 * (t & 1)
            for i in range(4):
                dpp("and_b32", s + i, src, vM + i, f"row_newbcast:{bc(t)}", bm=bank)
        sel(0)
        for t in range(n):
            if t < n - 1:
                sel(t + 1)
            s = AS + 4 * (t & 1)
            c = "0" if t == 0 else f"v[{dreg}:{dreg+3}]"
            a(f"v_mfma_f32_16x16x32_bf16 v[{dreg}:{dreg+3}], v[{s}:{s+3}], v[{wbase+4*t}:{wbase+4*t+3}], {c}")

    def xflag_store(base):
        a(f"""s_lshl_b32 s{sT1}, s{sG}, 7
        s_add_u32 s{sT1}, s{sT1}, {base}
        v_lshlrev_b32 v5, 10, v0
        s_mov_b64 exec, 0xff
        buffer_store_dword v30, v5, s[{sWS}:{sWS+3}], s{sT1} offen sc1
        s_mov_b64 exec, -1""")

    def xflag_poll(name, base, vo, tmp):
        a(f"""s_lshl_b32 s{sT1}, s{sG}, 10
        s_add_u32 s{sT1}, s{sT1}, {base}
        {name}:
        buffer_load_dword v{tmp}, v{vo}, s[{sWS}:{sWS+3}], s{sT1} offen sc1
        s_waitcnt vmcnt(0)
        v_cmp_ne_u32 vcc, s{sTAG}, v{tmp}""")
        poll_tail(name, name + "_go")

    def x2store():
        a("s_mov_b64 exec, 1")
        pub_store(30, 19, sHA, n=1)
        a("s_mov_b64 exec, -1")

    def oloads(G):
        for u in range(4):
            a(f"buffer_load_dwordx4 v[{G+4*u}:{G+4*u+3}], v{vGo}, s[{sWS}:{sWS+3}], s{sA} offen offset:{512*u} sc1")

    def ochain(G):
        for i in range(4):
            dpp("mul_f32", RR + i, 52, G + i, "quad_perm:[0,0,0,0]")
        for u in range(1, 4):
            for i in range(4):
                dpp("fmac_f32", RR + i, 52, G + 4 * u + i, f"quad_perm:[{u},{u},{u},{u}]")
    if stamps:
        a("s_waitcnt vmcnt(2)")
        stamp(14)
        a("s_waitcnt vmcnt(0)")
        stamp(1)
    a(f"""L_mpoll:
    buffer_load_dwordx4 v[52:55], v{vMo}, s[{sWS}:{sWS+3}], s{sB} offen sc1""")
    oloads(GD)
    a(f"""s_waitcnt vmcnt(4)
    v_cmp_ne_u32 vcc, s{sTAG}, v55""")
    poll_tail("L_mpoll", "L_mgo")
    oloads(GE)
    stamp(13)
    if xfl and xpos == 13:
        a(f"""s_lshl2_add_u32 s{sT0}, s{sS}, s{sW}
        s_cmp_lg_u32 s{sT0}, 3
        s_cbranch_scc1 L_nx1""")
        xflag_store(XF1)
        a("L_nx1:")
    a(f"""s_lshl_b32 s{sC}, s{sW}, 10
    s_add_u32 s{sC}, s{sC}, {L_RED}
    v_lshl_add_u32 v22, v0, 4, s{sC}
    v_and_b32 v7, 1, v0
    v_lshlrev_b32 v7, 4, v7
    v_lshrrev_b32 v1, 1, v0
    v_add_u32 v7, v7, v1
    v_lshlrev_b32 v7, 4, v7""")
    dpp("max_f32", 6, 52, 52, "quad_perm:[1,0,3,2]")
    dpp("max_f32", 6, 6, 6, "quad_perm:[2,3,0,1]")
    wave_red(6, sT0, op="max", steps=(8,))
    a(f"""v_subrev_f32 v52, s{sT0}, v52
    v_mul_f32 v52, s{sL2E}, v52
    v_exp_f32 v52, v52
    v_mul_f32 v6, v52, v53""")
    dpp("add_f32", 6, 6, 6, "quad_perm:[1,0,3,2]")
    dpp("add_f32", 6, 6, 6, "quad_perm:[2,3,0,1]")
    wave_red(6, sT0, steps=(8,))
    a(f"""v_rcp_f32 v6, s{sT0}
    v_mul_f32 v52, v52, v6
    L_opoll:
    s_waitcnt vmcnt(4)""")
    tagcheck(6, [GD + 4 * u + 3 for u in range(4)], [vTo_] * 4)
    a("s_cbranch_vccz L_ogo")
    oloads(GD)
    a("s_waitcnt vmcnt(4)")
    tagcheck(6, [GE + 4 * u + 3 for u in range(4)], [vTo_] * 4)
    a("s_cbranch_vccz L_oge")
    oloads(GE)
    a(f"""s_add_u32 s{sCNT}, s{sCNT}, 1
    s_cmp_lt_u32 s{sCNT}, {SPIN_LIMIT}
    s_cbranch_scc1 L_opoll
    L_oge:""")
    ochain(GE)
    a("s_branch L_oj\nL_ogo:")
    ochain(GD)
    a("L_oj:")
    stamp(7)
    if xfl and xpos == 7:
        a(f"""s_lshl2_add_u32 s{sT0}, s{sS}, s{sW}
        s_cmp_lg_u32 s{sT0}, 3
        s_cbranch_scc1 L_nx1""")
        xflag_store(XF1)
        a("L_nx1:")
    xreduce4(RR)
    dpp("add_f32", RR, RR, RR, "row_ror:8")
    a(f"v_cvt_pk_bf16_f32 v{RR}, v{RR}, v{RR}")
    gemv(RR, 8, WD, "0xf", DD)
    a(f"""s_lshl_b32 s{sA}, s{sKC}, 5
    s_add_u32 s{sA}, s{sA}, s{sT3}
    s_lshl_b32 s{sA}, s{sA}, 9
    s_add_u32 s{sA}, s{sA}, {HP}
    s_lshr_b32 s{sCB}, s{sS}, 2
    s_lshl3_add_u32 s{sCB}, s{sCB}, s{sG}
    s_lshl2_add_u32 s{sT2}, s{sCB}, s{sKC}
    ds_write_b128 v22, v[{DD}:{DD+3}]
    s_waitcnt lgkmcnt(0)
    s_barrier""")
    stamp(8)
    a(f"""s_cmp_lg_u32 s{sW}, 0
    s_cbranch_scc1 L_onot0
    s_mov_b32 exec_hi, 0""")
    for w in range(4):
        a(f"ds_read_b128 v[{112+4*w}:{112+4*w+3}], v7 offset:{L_RED+1024*w}")
    sum4(112)
    for j in range(4):
        a(f"v_bfi_b32 v{112+j}, s{sFF}, v{vT+j}, v{112+j}")
    a(f"""buffer_store_dwordx4 v[112:115], v19, s[{sWS}:{sWS+3}], s{sA} offen sc1
    s_mov_b32 exec_hi, -1
    L_onot0:
    s_barrier""")
    stamp(9)
    a(f"""s_cmp_ge_u32 s{sCB}, 28
    s_cbranch_scc1 L_kdone
    s_lshr_b32 s{sA}, s{sKC}, 1
    s_and_b32 s{sB}, s{sKC}, 1
    s_lshl1_add_u32 s{sA}, s{sCB}, s{sA}
    s_lshl3_add_u32 s{sA}, s{sA}, s{sB}
    s_lshl_b32 s{sA}, s{sA}, 12
    s_lshl_b32 s{sB}, s{sW}, 8
    s_add_u32 s{sA}, s{sA}, s{sB}
    s_add_u32 s{pW2}, s{pW2}, s{sA}
    s_addc_u32 s{pW2+1}, s{pW2+1}, 0""")
    for t in range(4):
        a(f"global_load_dwordx4 v[{WD+4*t}:{WD+4*t+3}], v{vWo}, s[{pW2}:{pW2+1}] nt")
        if t < 3:
            a(f"v_add_u32 v{vWo}, 0x2000, v{vWo}")
    a(f"""L_f2:
    s_lshl_b32 s{sC}, s{sCB}, 8
    s_add_u32 s{sC}, s{sC}, {ST}
    v_lshlrev_b32 v21, 4, v2
    s_lshl_b32 s{sA}, s{sT2}, 12
    s_add_u32 s{sA}, s{sA}, {GP}
    s_lshl2_add_u32 s{sB}, s{sT2}, s{sW}
    s_lshl_b32 s{sD}, s{sB}, 9
    s_add_u32 s{sD}, s{sD}, {FP}
    s_lshl4_add_u32 s{sHA}, s{sG}, s{sS}
    s_lshl2_add_u32 s{sHA}, s{sHA}, s{sW}
    s_lshl_b32 s{sHA}, s{sHA}, 2
    s_add_u32 s{sHA}, s{sHA}, {FL2}
    v_and_b32 v6, 7, v0
    v_lshlrev_b32 v6, 7, v6
    s_lshl_b32 s{sB}, s{sW}, 10
    s_add_u32 s{sB}, s{sB}, s{sA}
    buffer_load_dword v7, v6, s[{sWS}:{sWS+3}], s{sB} offen sc1
    L_spoll:
    buffer_load_dwordx4 v[36:39], v21, s[{sWS}:{sWS+3}], s{sC} offen sc1""")
    GU = 64

    def uloads():
        for u in range(4):
            a(f"buffer_load_dwordx4 v[{GU+4*u}:{GU+4*u+3}], v19, s[{sWS}:{sWS+3}], s{sA} offen offset:{1024*u} sc1")
    a(f"""s_waitcnt vmcnt(0)
    v_cmp_ne_u32 vcc, s{sTAG}, v39""")
    poll_tail("L_spoll", "L_sgo")
    uloads()
    if x2pos == 10:
        x2store()
    stamp(10)
    dpp("add_f32", 6, 36, 36, "row_ror:8")
    for k in (4, 2, 1):
        dpp("add_f32", 6, 6, 6, f"row_ror:{k}")
    a(f"""v_mul_f32 v6, 0x3d800000, v6
    v_sub_f32 v36, v36, v6
    v_mul_f32 v36, v36, v36
    v_fmac_f32 v37, 0x42000000, v36""")
    for k in (8, 4, 2, 1):
        dpp("add_f32", 37, 37, 37, f"row_ror:{k}")
    round_bf16(6, "v6")
    a(f"""v_mul_f32 v37, 0x3b000000, v37
    v_sub_f32 v6, 0, v6""")
    round_bf16(37, "v37")
    a(f"v_add_f32 v37, {hex(EPS)}, v37")
    round_bf16(37, "v37")
    a(f"v_sqrt_f32 v37, v37")
    round_bf16(37, "v37")
    a(f"""v_rcp_f32 v37, v37
    s_branch L_uchk
    L_upoll:""")
    uloads()
    a("L_uchk:\ns_waitcnt vmcnt(0)")
    tagcheck(7, [GU + 4 * u + 3 for u in range(4)], [vT + 3] * 4)
    poll_tail("L_upoll", "L_ugo")
    if x2pos == 11:
        x2store()
    stamp(11)
    a(f"""v_pk_add_f32 v[32:33], v[{GU}:{GU+1}], v[{GU+4}:{GU+5}]
    v_pk_add_f32 v[34:35], v[{GU+2}:{GU+3}], v[{GU+6}:{GU+7}]
    v_pk_add_f32 v[{GU+8}:{GU+9}], v[{GU+8}:{GU+9}], v[{GU+12}:{GU+13}]
    v_pk_add_f32 v[{GU+10}:{GU+11}], v[{GU+10}:{GU+11}], v[{GU+14}:{GU+15}]
    v_pk_add_f32 v[32:33], v[32:33], v[{GU+8}:{GU+9}]
    v_pk_add_f32 v[34:35], v[34:35], v[{GU+10}:{GU+11}]""")
    xreduce4(32)
    dpp("fmac_f32", 32, 32, 6, "row_shl:4")
    a(f"v_mul_f32 v33, v32, v37")
    round_bf16(33, "v33")
    a(f"""v_mul_f32 v34, {hex(LOG2E | 0x80000000)}, v33
    v_exp_f32 v34, v34
    v_add_f32 v34, 1.0, v34
    v_rcp_f32 v34, v34
    v_mul_f32 v34, v33, v34""")
    round_bf16(34, "v34")
    dpp("mul_f32", 34, 33, 34, "row_shl:8")
    a(f"v_cvt_pk_bf16_f32 v34, v34, v34")
    gemv(34, 4, WD, "0xf", DD)
    a(f"s_mov_b32 exec_hi, 0")
    for j in range(4):
        a(f"v_bfi_b32 v{DD+j}, s{sFF}, v{vT+j}, v{DD+j}")
    a(f"""buffer_store_dwordx4 v[{DD}:{DD+3}], v19, s[{sWS}:{sWS+3}], s{sD} offen sc1
    s_mov_b32 exec_hi, -1""")
    if x2pos == 12:
        x2store()
    stamp(12)
    a("s_branch L_kdone")

    inK[0] = 'F'
    a(f"""L_frole:
    s_cmp_eq_u32 s{sROLE}, 2
    s_cbranch_scc1 L_now13
    v_mov_b32 v7, 0""")
    a(WAF)
    wn[0] = 0
    wloads(8)
    a("L_now13:")
    a(f"""s_lshl_b32 s{sD}, s{sKC}, 8
    s_lshl_b32 s{sB}, s{sW}, 6
    s_add_u32 s{sD}, s{sD}, s{sB}
    v_and_b32 v7, 7, v0
    v_lshl_add_u32 v6, v7, 2, v{vI}
    v_lshlrev_b32 v6, 1, v6
    buffer_load_short_d16_hi v22, v6, s[{sX}:{sX+3}], s{sD} offen
    v_lshlrev_b32 v28, 7, v7
    v_mov_b32 v23, 0x3f803f80
    v_and_b32 v7, 1, v2
    v_lshlrev_b32 v7, 4, v7
    v_mov_b32 v6, 0xffff
    v_lshlrev_b32 v6, v7, v6
    v_and_b32 v23, v23, v6
    v_bfe_u32 v7, v2, 1, 2""")
    for i in range(4):
        a(f"v_cmp_eq_u32 vcc, {i}, v7")
        a(f"v_cndmask_b32 v{AS+i}, 0, v23, vcc")
        a(f"v_mov_b32 v{AS+4+i}, v{AS+i}")
    a(f"""s_lshl_b32 s{sA}, s{sKC}, 14
    s_lshl_b32 s{sB}, s{sW}, 7
    s_add_u32 s{sA}, s{sA}, s{sB}
    s_add_u32 s{sA}, s{sA}, {HP}
    v_lshrrev_b32 v6, 3, v0
    v_and_b32 v7, 7, v0
    v_lshlrev_b32 v20, 11, v6
    v_lshl_add_u32 v20, v7, 4, v20
    s_lshl2_add_u32 s{sT0}, s{sT2}, s{sW}
    s_lshl_b32 s{sB}, s{sT0}, 4
    s_add_u32 s{sB}, s{sB}, {ST}
    v_and_b32 v5, 3, v0
    v_lshlrev_b32 v5, 4, v5
    v_bfe_u32 v4, v0, 2, 1
    v_lshl_add_u32 v5, v4, 13, v5
    v_bfe_u32 v4, v0, 4, 1
    v_lshl_add_u32 v5, v4, 12, v5
    v_bfe_u32 v4, v0, 3, 1
    v_lshl_add_u32 v5, v4, 7, v5
    v_bfe_u32 v4, v0, 5, 1
    v_lshl_add_u32 v5, v4, 6, v5
    s_lshl_b32 s{sC}, s{sCB}, 14
    s_and_b32 s{sD}, s{sT0}, 15
    s_lshl_b32 s{sD}, s{sD}, 8
    s_add_u32 s{sC}, s{sC}, s{sD}
    s_add_u32 s{sC}, s{sC}, {GP}""")
    a(f"""s_bfe_u32 s{sT0}, s{sS}, 0x20002
    s_and_b32 s{sT1}, s{sG}, 1
    s_lshl1_add_u32 s{sT0}, s{sT0}, s{sT1}      ; b
    s_lshr_b32 s{sT1}, s{sG}, 2
    s_lshl3_add_u32 s{sT0}, s{sT1}, s{sT0}      ; n>>1
    s_bfe_u32 s{sT1}, s{sG}, 0x10001            ; n&1
    s_lshl1_add_u32 s{sRN}, s{sT0}, s{sT1}      ; n
    s_lshl1_add_u32 s{sT1}, s{sKC}, s{sT1}
    s_lshl4_add_u32 s{sHA}, s{sT1}, s{sT0}      ; G
    s_lshl_b32 s{sXO}, s{sKC}, 5
    s_add_u32 s{sXO}, s{sXO}, s{sRN}
    s_lshl_b32 s{sXO}, s{sXO}, 3
    s_lshl_b32 s{sT0}, s{sHA}, 3
    v_lshlrev_b32 v132, 1, v{vI}""")
    for j in range(4):
        a(f"s_add_u32 s{sT3}, s{sT0}, {8*j}")
        a(f"v_mov_b32 v7, s{sT3}")
        a(f"v_alignbit_b32 v{128+j}, s{sTAG}, s{sTAG}, v7")
    if stamps:
        a("s_waitcnt vmcnt(0)")
        stamp(11)
    if xfl:
        xflag_poll("L_fx1", XF1, 28, 29)
        if fdelay: a(f"s_sleep {fdelay}")
    stamp(7)
    HD = 52
    a("L_gpoll:")
    for u in range(4):
        a(f"buffer_load_dwordx4 v[{HD+4*u}:{HD+4*u+3}], v20, s[{sWS}:{sWS+3}], s{sA} offen offset:{512*u} sc1")
    a(f"s_waitcnt vmcnt(0)")
    tagcheck(6, [HD + 4 * u + 3 for u in range(4)], [vT + 3] * 4)
    poll_tail("L_gpoll", "L_ggo")
    stamp(8)
    a(f"""v_pk_add_f32 v[{HD}:{HD+1}], v[{HD}:{HD+1}], v[{HD+4}:{HD+5}]
    v_pk_add_f32 v[{HD+2}:{HD+3}], v[{HD+2}:{HD+3}], v[{HD+6}:{HD+7}]
    v_pk_add_f32 v[{HD+8}:{HD+9}], v[{HD+8}:{HD+9}], v[{HD+12}:{HD+13}]
    v_pk_add_f32 v[{HD+10}:{HD+11}], v[{HD+10}:{HD+11}], v[{HD+14}:{HD+15}]
    v_pk_add_f32 v[{HD}:{HD+1}], v[{HD}:{HD+1}], v[{HD+8}:{HD+9}]
    v_pk_add_f32 v[{HD+2}:{HD+3}], v[{HD+2}:{HD+3}], v[{HD+10}:{HD+11}]
    v_and_b32 v22, s{sHI}, v22""")
    xreduce4(HD)
    dpp("add_f32", HD, HD, HD, "row_ror:8")
    round_bf16(HD, f"v{HD}")
    a(f"""v_add_f32 v{HD}, v22, v{HD}
    v_cvt_pk_bf16_f32 v{HD}, v{HD}, v{HD}
    v_and_b32 v22, s{sHI}, v{HD}
    s_cmp_eq_u32 s{sROLE}, 2
    s_cbranch_scc1 L_red
    v_readfirstlane_b32 s{sT0}, v22""")
    a(f"""v_subrev_f32 v6, s{sT0}, v22
    v_mul_f32 v7, v6, v6""")
    for k in (4, 2, 1):
        dpp("add_f32", 6, 6, 6, f"row_ror:{k}")
        dpp("add_f32", 7, 7, 7, f"row_ror:{k}")
    for ctl, rm in (("row_bcast:15", "0xa"), ("row_bcast:31", "0xc")):
        dpp("add_f32", 6, 6, 6, ctl, rm=rm)
        dpp("add_f32", 7, 7, 7, ctl, rm=rm)
    a(f"""v_mul_f32 v28, 0x3d000000, v6
    v_fma_f32 v29, -v28, v6, v7
    v_add_f32 v28, s{sT0}, v28
    v_mov_b32 v4, 0
    s_mov_b32 exec_lo, 0
    s_mov_b32 exec_hi, 0x80000000""")
    pub_store(28, 4, sB)
    a("s_mov_b64 exec, -1")
    stamp(9)
    gemv(HD, 8, WD, "0x3", DD)
    a(f"v_bfi_b32 v{DD+3}, s{sFF}, v{vT+3}, v{DD+3}")
    pub_store(DD, 5, sC)
    stamp(10)
    a(f"""L_red:
    s_lshr_b32 s{sT0}, s{sRN}, 3
    s_cmp_lg_u32 s{sT0}, s{sW}
    s_cbranch_scc1 L_kdone
    s_lshl_b32 s{sA}, s{sHA}, 4
    s_add_u32 s{sA}, s{sA}, {FP}
    s_add_u32 s{sB}, s{sA}, {64*2048}
    v_lshlrev_b32 v6, 11, v0
    s_lshl_b32 s{sD}, s{sG}, 8
    s_add_u32 s{sD}, s{sD}, {FL2}
    s_cmp_lt_u32 s{sG}, 4
    s_cselect_b32 s{sT1}, 63, 47
    v_min_u32 v28, s{sT1}, v0
    v_lshlrev_b32 v28, 2, v28
    s_and_b32 s{sT0}, s{sRN}, 7
    s_lshl_b32 s{sRN}, 0x00010001, s{sT0}""")
    for j in range(4):
        a(f"v_and_b32 v{36+j}, s{sFF}, v{128+j}")
    flag_poll("L_rx2", 28, sD, 29)
    if rdelay:
        a(f"s_sleep {rdelay}")
    stamp(14)
    a(f"""L_fpoll:
    buffer_load_dwordx4 v[32:35], v6, s[{sWS}:{sWS+3}], s{sA} offen sc1
    s_mov_b32 exec_hi, 0xffff
    buffer_load_dwordx4 v[36:39], v6, s[{sWS}:{sWS+3}], s{sB} offen sc1
    s_mov_b32 exec_hi, -1
    s_waitcnt vmcnt(0)""")
    tagcheck(7, list(range(32, 40)), [128, 129, 130, 131] * 2)
    poll_tail("L_fpoll", "L_fgo")
    stamp(1)
    a(f"""v_pk_add_f32 v[32:33], v[32:33], v[36:37]
    v_pk_add_f32 v[34:35], v[34:35], v[38:39]""")
    xreduce4(32)
    for k in (8, 4, 2, 1):
        dpp("add_f32", 32, 32, 32, f"row_ror:{k}")
    round_bf16(32, "v32")
    a(f"""v_add_f32 v32, v22, v32
    v_cvt_pk_bf16_f32 v32, v32, v32
    s_mov_b32 exec_lo, s{sRN}
    s_mov_b32 exec_hi, s{sRN}
    buffer_store_short v32, v132, s[{sOUT}:{sOUT+3}], s{sXO} offen
    s_cmpk_lg_u32 s2, 128
    s_cbranch_scc1 L_noep
    s_mov_b64 exec, 1
    buffer_store_dword v30, v19, s[{sWS}:{sWS+3}], 0 offen sc1
    L_noep:""")
    stamp(2)
    if gprobe is not None:
        a(f"""s_cmpk_lg_u32 s2, 128
        s_cbranch_scc1 L_kdone
        s_memrealtime s[{sSTAMP0+4}:{sSTAMP0+5}]
        s_load_dwordx2 s[94:95], s[0:1], 80
        s_mov_b32 s96, 0
        s_mov_b32 s93, 0
        s_waitcnt lgkmcnt(0)
        s_atomic_umax s96, s[94:95], 0 glc
        s_atomic_umax s93, s[94:95], 64 glc
        s_waitcnt lgkmcnt(0)
        s_not_b32 s93, s93
        s_sub_u32 s{sA}, s96, s93
        s_lshl_b32 s{sA}, s{sA}, 2
        s_min_u32 s{sA}, s{sA}, 10000
        L_probe2:
        s_memrealtime s[{sC}:{sD}]
        s_waitcnt lgkmcnt(0)
        s_sub_u32 s{sB}, s{sC}, s{sSTAMP0+4}
        s_cmp_lt_u32 s{sB}, s{sA}
        s_cbranch_scc1 L_probe2""")
    if probe is not None:
        a(f"""s_cmpk_lg_u32 s2, 128
        s_cbranch_scc1 L_kdone
        s_memrealtime s[{sSTAMP0+4}:{sSTAMP0+5}]
        s_waitcnt lgkmcnt(0)
        s_sub_u32 s{sA}, s{sSTAMP0+2*probe}, s{sSTAMP0}
        s_lshl_b32 s{sA}, s{sA}, 2
        s_min_u32 s{sA}, s{sA}, 10000
        L_probe:
        s_memrealtime s[{sC}:{sD}]
        s_waitcnt lgkmcnt(0)
        s_sub_u32 s{sB}, s{sC}, s{sSTAMP0+4}
        s_cmp_lt_u32 s{sB}, s{sA}
        s_cbranch_scc1 L_probe""")
    a("L_kdone:")
    flush_stamps()
    a("s_endpgm")
    for s_ in slow:
        a(s_)
    a("L_end:")
    body = pad(a.text(), verbose=False)
    return single_file(body, 256, 320, LDS_BYTES, 168, sgpr=100)


if __name__ == "__main__":
    import json
    variants = json.loads(sys.argv[1]) if len(sys.argv) > 1 else {"k6": {}}
    for n, kw in variants.items():
        open(n + ".s", "w").write(gen(**kw))
        if "probe" not in kw and "gprobe" not in kw:
            open(n + "_st.s", "w").write(gen(stamps=True, **kw))
```

```python
import sys
from gl import *
from hz import pad
from al import align

EPOCH = 0
XF1 = 0x7c000
XF2 = 0x7e000
FL1 = 0x400
FL2 = 0x800
QP = 0x1000
ML = 0x11000
ST = 0x15000
GP = 0x120000
HP = 0x34000
FP = 0x44000
QB = 0x100000
OP = 0x80000
STAMPS = 0x200000
L_Q = 0
L_FLAG = 1024
L_ML = 1056
L_DUMMY = 1280
L_OW = 2304
L_RED = L_OW + 8192
L_STQ = L_RED + 4096
LDS_BYTES = L_RED + 4096 + 64
SPIN_LIMIT = 200000
LOG2E = 0x3fb8aa3b
SCALE = 0x3db504f3
EPS = 0x3727c5ac

sK, sV, sWQ, sWS, sX, sOUT = 8, 12, 16, 36, 40, 44
pWO, pW1, pW3, pW2 = 20, 24, 26, 28
sRHO, sWOF = 34, 35
sXO, sHA, sRN = 4, 5, 6
sSTR = 32
sG, sS, sW = 48, 49, 50
sTAG, sEP = 51, 52
sT0, sT1, sT2, sT3 = 53, 54, 55, 56
sCNT = 57
sFF, sHI = 58, 59
sROLE, sCOL = 60, 61
sA, sB, sC, sD = 62, 63, 64, 65
sKC, sCB = 66, 67
sXCC = 68
sL2E = 69
sSTAMP0 = 70


def gen(stamps=False, probe=None, win=8, win0=None, kalign=12, oalign=12, al8=True, flags=True, qdelay=19, ack=False, tlb=False, dbg=False, b0pos=-2, pre=0, qdual=True, na=4, qst='', qwarm=False, lst='', fearly=False, p1=4, n1=4, afirst=True, wpol='sc1', n2=4, wpre=4, wwait=False, tv=False, rho=True, wodiag=False, xfl=True, rdelay=7, fdelay=5, xpos=7, x2pos=11, gprobe=None, wlate=False, fsleep=20, fbar=False, fmid=0, ssleep=0, rsleep=0, fp2=True, mret=True, coop=True, wolate=False, odelay=0, fwdelay=0, wb1=False, wb2=False, owarm='nt', wmask=0xffffffff,
        l2warm=False, spr=(0, 0, 0, 0), lpath=True):
    a = Asm()
    slow = []
    if win0 is None:
        win0 = win
    diag = stamps or probe is not None or gprobe is not None

    inK = [False]

    def stamp(k):
        if stamps or (probe is not None and k in (0, probe)) or (gprobe is not None and k == 0):
            a(f"s_memrealtime s[{sSTAMP0+2*k}:{sSTAMP0+2*k+1}]")
        if gprobe is not None and inK[0] and k == gprobe[0] and inK[0] in gprobe[1]:
            l = a.label("L_gp")
            a(f"""s_and_b32 s98, s{sS}, 7
            s_lshl2_add_u32 s98, s98, s{sW}
            s_cmp_lg_u32 s98, 0
            s_cbranch_scc1 {l}
            s_memrealtime s[96:97]
            s_load_dwordx2 s[94:95], s[0:1], 80
            s_waitcnt lgkmcnt(0)
            s_not_b32 s93, s{sSTAMP0}
            {'s_mov_b32 s96, s%d' % sSTAMP0 if gprobe[2] else ''}
            s_atomic_umax s96, s[94:95], 0
            s_atomic_umax s93, s[94:95], 64
            {l}:""")

    def flush_stamps():
        if not stamps:
            return
        a(f"""s_waitcnt lgkmcnt(0)
        s_mov_b64 exec, 1
        s_lshl_b32 s{sA}, s2, 3
        s_add_u32 s{sA}, s{sA}, s3
        s_lshl_b32 s{sA}, s{sA}, 6
        s_add_u32 s{sA}, s{sA}, {STAMPS}
        v_mov_b32 v1, 0""")
        for k in range(0, 16, 4):
            for j in range(4):
                a(f"v_mov_b32 v{4+j}, s{sSTAMP0+2*(k+j) if k + j < 15 else sCNT}")
            a(f"buffer_store_dwordx4 v[4:7], v1, s[{sWS}:{sWS+3}], s{sA} offen offset:{k*4}")
        a(f"""s_cmp_lg_u32 s3, 4
        s_cbranch_scc1 L_nq
        s_sub_u32 s{sA}, s{sA}, 256
        v_mov_b32 v2, {L_STQ}""")
        for k in range(4):
            a(f"ds_read_b128 v[4:7], v2 offset:{16*k}\ns_waitcnt lgkmcnt(0)\nbuffer_store_dwordx4 v[4:7], v1, s[{sWS}:{sWS+3}], s{sA} offen offset:{k*16}")
        a("L_nq:\ns_waitcnt vmcnt(0)")

    def epoch_to_tag():
        a(f"""s_and_b32 s{sT0}, s{sEP}, 0xff
        s_add_u32 s{sTAG}, s{sT0}, 1
        s_and_b32 s{sTAG}, s{sTAG}, 0xff""")
        for i in (1, 2, 3):
            a(f"""s_bfe_u32 s{sT1}, s{sEP}, {hex(0x80000 | (8*i))}
            s_add_u32 s{sT1}, s{sT1}, 1
            s_and_b32 s{sT1}, s{sT1}, 0xff
            s_cmp_eq_u32 s{sT1}, s{sT0}
            s_addc_u32 s{sT1}, s{sT1}, 0
            s_and_b32 s{sT1}, s{sT1}, 0xff
            s_lshl_b32 s{sT1}, s{sT1}, {8*i}
            s_or_b32 s{sTAG}, s{sTAG}, s{sT1}""")

    def round_bf16(dst, src):
        a(f"v_cvt_pk_bf16_f32 v{dst}, {src}, {src}")
        a(f"v_and_b32 v{dst}, s{sHI}, v{dst}")

    def dpp(op, d, s0, s1, ctl, rm="0xf", bm="0xf"):
        a(f"v_{op}_dpp v{d}, v{s0}{'' if s1 is None else ', v%d' % s1} {ctl} row_mask:{rm} bank_mask:{bm}")

    def wave_red(v, sdst, op="add", steps=(8, 4, 2, 1)):
        for k in steps:
            dpp(op + "_f32", v, v, v, f"row_ror:{k}")
        dpp(op + "_f32", v, v, v, "row_bcast:15", rm="0xa")
        dpp(op + "_f32", v, v, v, "row_bcast:31", rm="0xc")
        a(f"v_readlane_b32 s{sdst}, v{v}, 63")

    def poll_tail(lab, go):
        a(f"""s_cbranch_vccz {go}
        s_add_u32 s{sCNT}, s{sCNT}, 1
        s_cmp_lt_u32 s{sCNT}, {SPIN_LIMIT}
        s_cbranch_scc1 {lab}
        {go}:""")

    def xreduce4(r0):
        a(f"""v_permlane32_swap_b32 v{r0}, v{r0+1}
        v_permlane32_swap_b32 v{r0+2}, v{r0+3}
        v_add_f32 v{r0}, v{r0}, v{r0+1}
        v_add_f32 v{r0+2}, v{r0+2}, v{r0+3}
        v_permlane16_swap_b32 v{r0}, v{r0+2}
        v_add_f32 v{r0}, v{r0}, v{r0+2}""")

    def pub_store(data, voff, soff, n=4):
        ins = f"buffer_store_dwordx4 v[{data}:{data+3}]" if n == 4 else f"buffer_store_dword v{data}"
        ins += f", v{voff}, s[{sWS}:{sWS+3}], s{soff} offen"
        if not lpath:
            a(ins + " sc1")
            return
        l1 = a.label("L_wt"); l2 = a.label("L_wb")
        a(f"""s_cmp_eq_u32 s{sCOL}, 1
        s_cbranch_scc0 {l1}
        {ins} {lst}
        {l2}:""")
        slow.append(f"{l1}:\n{ins} sc1\ns_branch {l2}")

    def build_masks(vM):
        a(f"""v_and_b32 v7, 1, v2
        v_lshlrev_b32 v7, 4, v7
        v_mov_b32 v13, 0xffff
        v_lshlrev_b32 v13, v7, v13
        v_bfe_u32 v7, v2, 1, 2""")
        for i in range(4):
            a(f"v_cmp_eq_u32 vcc, {i}, v7")
            a(f"v_cndmask_b32 v{vM+i}, 0, v13, vcc")

    def flag_poll(name, voff, soff, tmp):
        if not flags:
            return
        a(f"""{name}:
        buffer_load_dword v{tmp}, v{voff}, s[{sWS}:{sWS+3}], s{soff} offen sc1
        s_waitcnt vmcnt(0)
        v_cmp_ne_u32 vcc, s{sTAG}, v{tmp}""")
        poll_tail(name, name + "_go")

    def sum4(r):
        a(f"""s_waitcnt lgkmcnt(2)
        v_pk_add_f32 v[{r}:{r+1}], v[{r}:{r+1}], v[{r+4}:{r+5}]
        v_pk_add_f32 v[{r+2}:{r+3}], v[{r+2}:{r+3}], v[{r+6}:{r+7}]
        s_waitcnt lgkmcnt(0)
        v_pk_add_f32 v[{r+8}:{r+9}], v[{r+8}:{r+9}], v[{r+12}:{r+13}]
        v_pk_add_f32 v[{r+10}:{r+11}], v[{r+10}:{r+11}], v[{r+14}:{r+15}]
        v_pk_add_f32 v[{r}:{r+1}], v[{r}:{r+1}], v[{r+8}:{r+9}]
        v_pk_add_f32 v[{r+2}:{r+3}], v[{r+2}:{r+3}], v[{r+10}:{r+11}]""")

    def tagcheck(acc, regs, tags, mask=True):
        a(f"v_xor_b32 v{acc}, v{regs[0]}, v{tags[0]}")
        for r, t in zip(regs[1:], tags[1:]):
            a(f"v_bitop3_b32 v{acc}, v{acc}, v{r}, v{t} bitop3:0xf6")
        a(f"""v_and_b32 v{acc}, s{sFF}, v{acc}
        v_cmp_ne_u32 vcc, 0, v{acc}""")

    vXS, vXL, vWo = 4, 5, 6
    X, XS, WQ = 16, 20, 64
    stamp(0)
    a(f"""s_load_dwordx2 s[{sX}:{sX+1}], s[0:1], 0
    s_load_dwordx2 s[{sWQ}:{sWQ+1}], s[0:1], 24
    s_load_dwordx4 s[{sK}:{sK+3}], s[0:1], 8
    s_load_dwordx2 s[{sWS}:{sWS+1}], s[0:1], 88
    v_readfirstlane_b32 s3, v0
    s_cmpk_ge_u32 s2, 256
    s_cbranch_scc1 L_end
    s_lshr_b32 s3, s3, 6
    s_cbranch_scc0 L_q
    s_cmp_lg_u32 s3, 4
    s_cbranch_scc1 L_kreg
    s_cmp_ge_u32 s2, 16
    s_cbranch_scc1 L_100
    s_getpc_b64 s[{sC}:{sD}]
    L_pc:
    v_lshlrev_b32 v7, 7, v0
    v_add_u32 v7, 0xffff8000, v7
    global_load_dword v140, v7, s[{sC}:{sD}]
    v_add_u32 v7, 0x2000, v7
    v_min_u32 v7, L_end-L_pc, v7
    global_load_dword v140, v7, s[{sC}:{sD}]
    s_branch L_100
    L_q:
    s_mov_b32 s{sX+3}, 0x20000
    s_movk_i32 s{sX+2}, 1024
    s_mov_b32 s{sWQ+3}, s{sX+3}
    s_lshl_b32 s{sWQ+2}, 1, 22
    s_bfe_u32 s{sKC}, s2, 0x20003
    s_lshr_b32 s{sCB}, s2, 5
    s_and_b32 s{sG}, s2, 7
    v_lshlrev_b32 v{vXS}, 4, v0
    v_lshrrev_b32 v{vXL}, 3, v0
    v_lshlrev_b32 v{vWo}, 17, v{vXL}
    v_and_b32 v7, 7, v0
    v_lshl_add_u32 v{vWo}, v7, 4, v{vWo}
    v_lshlrev_b32 v{vXL}, 5, v{vXL}
    s_lshl_b32 s{sA}, s{sKC}, 8
    s_lshl_b32 s{sB}, s{sKC}, 10
    s_add_u32 s{sB}, s{sB}, s{sG}
    s_lshl3_add_u32 s{sB}, s{sB}, s{sCB}
    s_lshl_b32 s{sB}, s{sB}, 7
    s_waitcnt lgkmcnt(0)
    buffer_load_dwordx4 v[{X}:{X+3}], v{vXS}, s[{sX}:{sX+3}], 0 offen
    buffer_load_dwordx4 v[{XS}:{XS+3}], v{vXL}, s[{sX}:{sX+3}], s{sA} offen
    buffer_load_dwordx4 v[{XS+4}:{XS+7}], v{vXL}, s[{sX}:{sX+3}], s{sA} offen offset:16""")
    nfirst = 0 if diag else 1
    for t in range(16):
        if t == nfirst:
            a(f"""s_branch L_q2
            .p2align 8
            L_100:
            s_branch L_kreg
            L_q2:
            s_setprio 3
            s_movk_i32 s{sD}, 0x2000""")
        if t > 0:
            a(f"s_add_u32 s{sB}, s{sB}, s{sD}")
        a(f"buffer_load_dwordx4 v[{WQ+4*t}:{WQ+4*t+3}], v{vWo}, s[{sWQ}:{sWQ+3}], s{sB} offen nt")
    if b0pos == 0: a("s_barrier")

    vM, vT3 = 8, 12
    U, vA, D, PP = 28, 36, 44, 48
    stamp(1)
    a(f"""s_load_dword s{sEP}, s[{sWS}:{sWS+1}], {EPOCH}
    s_mov_b32 s{sWS+3}, s{sX+3}
    s_lshl_b32 s{sWS+2}, 1, 28
    s_lshr_b32 s{sS}, s2, 3
    v_and_b32 v2, 15, v0
    v_lshrrev_b32 v3, 4, v0
    s_mov_b32 s{sFF}, 0xff
    s_mov_b32 s{sHI}, 0xffff0000
    s_mov_b32 s{sCNT}, 0""")
    build_masks(vM)
    a(f"""s_getreg_b32 s{sXCC}, hwreg(HW_REG_XCC_ID)
    s_and_b32 s{sXCC}, s{sXCC}, 0xff
    v_and_b32 v7, 7, v0
    v_lshl_add_u32 v7, v3, 3, v7
    v_lshlrev_b32 v7, 4, v7
    s_lshl_b32 s{sA}, s{sG}, 13
    s_add_u32 s{sA}, s{sA}, {QP}
    s_lshl_b32 s{sB}, s{sKC}, 11
    s_add_u32 s{sB}, s{sB}, s{sA}
    s_lshl_b32 s{sC}, s{sCB}, 8
    s_add_u32 s{sB}, s{sB}, s{sC}
    s_add_u32 s{sC}, s{sA}, 4096
    v_mov_b32 v13, s{sXCC}""")
    if qdual and qwarm:
        a(f"""v_lshlrev_b32 v14, 7, v0
        s_mov_b64 exec, 3
        buffer_load_dword v15, v14, s[{sWS}:{sWS+3}], s{sB} offen sc1
        s_mov_b64 exec, -1""")
    nx = 1 if (qdual and qwarm) else 0
    a(f"s_waitcnt vmcnt({18+nx})")
    if b0pos == 1: a("s_barrier")
    stamp(2)
    for i in range(4):
        a(f"v_lshlrev_b32 v{U+2*i}, 16, v{X+i}")
        a(f"v_and_b32 v{U+2*i+1}, s{sHI}, v{X+i}")
    a(f"""v_pk_add_f32 v[{vA}:{vA+1}], v[{U}:{U+1}], v[{U+2}:{U+3}]
    v_pk_add_f32 v[{vA+2}:{vA+3}], v[{U+4}:{U+5}], v[{U+6}:{U+7}]
    v_pk_add_f32 v[{vA}:{vA+1}], v[{vA}:{vA+1}], v[{vA+2}:{vA+3}]
    v_add_f32 v{vA}, v{vA}, v{vA+1}""")
    wave_red(vA, sT0)
    if b0pos == -1: a("s_barrier")
    a(f"""v_mov_b32 v14, 0x3b000000
    v_mul_f32 v14, s{sT0}, v14""")
    for i in range(4):
        a(f"v_pk_add_f32 v[{U+2*i}:{U+2*i+1}], v[{U+2*i}:{U+2*i+1}], v[14:15] op_sel_hi:[1,0] neg_lo:[0,1] neg_hi:[0,1]")
    a(f"v_pk_mul_f32 v[{vA}:{vA+1}], v[{U}:{U+1}], v[{U}:{U+1}]")
    for i in range(1, 4):
        a(f"v_pk_fma_f32 v[{vA}:{vA+1}], v[{U+2*i}:{U+2*i+1}], v[{U+2*i}:{U+2*i+1}], v[{vA}:{vA+1}]")
    a(f"v_add_f32 v{vA}, v{vA}, v{vA+1}")
    wave_red(vA, sT0)
    if b0pos == -2: a("s_barrier")
    round_bf16(14, "v14")
    a(f"""v_mov_b32 v40, 0x3b000000
    v_mul_f32 v40, s{sT0}, v40""")
    round_bf16(40, "v40")
    a(f"v_add_f32 v40, {hex(EPS)}, v40")
    round_bf16(40, "v40")
    a(f"v_sqrt_f32 v40, v40")
    round_bf16(40, "v40")
    a(f"v_rcp_f32 v40, v40")
    a(f"s_waitcnt vmcnt({16+nx})")
    for j in range(8):
        u = U + 2 * (j % 4)
        a(f"""v_lshlrev_b32 v{u}, 16, v{XS+j}
        v_and_b32 v{u+1}, s{sHI}, v{XS+j}
        v_pk_add_f32 v[{u}:{u+1}], v[{u}:{u+1}], v[14:15] op_sel_hi:[1,0] neg_lo:[0,1] neg_hi:[0,1]
        v_cvt_pk_bf16_f32 v{u+1}, v{u}, v{u+1}
        v_lshlrev_b32 v{u}, 16, v{u+1}
        v_and_b32 v{u+1}, s{sHI}, v{u+1}
        v_pk_mul_f32 v[{u}:{u+1}], v[{u}:{u+1}], v[40:41] op_sel_hi:[1,0]
        v_cvt_pk_bf16_f32 v{PP+2*j}, v{u}, v{u}
        v_cvt_pk_bf16_f32 v{PP+2*j+1}, v{u+1}, v{u+1}""")
    if b0pos == 2: a("s_barrier")
    stamp(3)
    a(f"s_waitcnt lgkmcnt(0)")
    epoch_to_tag()
    a(f"""v_lshlrev_b32 v14, 3, v0
    v_add_u32 v14, 24, v14
    v_alignbit_b32 v{vT3}, s{sTAG}, s{sTAG}, v14""")
    stamp(8)

    def selA(t):
        s = vA + 4 * (t & 1)
        for i in range(4):
            a(f"v_and_b32 v{s+i}, v{PP+t}, v{vM+i}")
    selA(0)
    for t in range(16):
        if t < 15:
            selA(t + 1)
        a(f"s_waitcnt vmcnt({15-t+nx})")
        if b0pos == 3 + t: a("s_barrier")
        s = vA + 4 * (t & 1)
        c = "0" if t == 0 else f"v[{D}:{D+3}]"
        a(f"v_mfma_f32_16x16x32_bf16 v[{D}:{D+3}], v[{s}:{s+3}], v[{WQ+4*t}:{WQ+4*t+3}], {c}")
    for i in range(4):
        a(f"v_mov_b32 v{U+i}, v{D+i}")
    for i in range(4):
        a(f"v_permlane32_swap_b32 v{D+i}, v{U+i}")
    for i in range(4):
        dpp("add_f32", D + i, U + i, D + i, "row_ror:8")
    a(f"""v_bfi_b32 v{D+2}, s{sFF}, v13, v{D+2}
    v_bfi_b32 v{D+3}, s{sFF}, v{vT3}, v{D+3}
    s_mov_b64 exec, 0x00ff00ff
    """)
    if qdual:
        a(f"""buffer_store_dwordx4 v[{D}:{D+3}], v7, s[{sWS}:{sWS+3}], s{sB} offen {qst}
        s_add_u32 s{sB}, s{sB}, {QB - QP}""")
    a(f"""buffer_store_dwordx4 v[{D}:{D+3}], v7, s[{sWS}:{sWS+3}], s{sB} offen sc1
    s_mov_b64 exec, -1""")
    if p1: a("s_barrier")
    stamp(4)
    a(f"""v_and_b32 v14, 8, v0
    v_add_u32 v7, v7, v14""")
    if l2warm:
        a(f"""s_lshl_b32 s{sT0}, s{sG}, 16
        s_lshl_b32 s{sT1}, s{sS}, 11
        s_add_u32 s{sT0}, s{sT0}, s{sT1}
        s_add_u32 s{sT0}, s{sT0}, {OP}
        v_lshlrev_b32 v15, 7, v0
        v_add_u32 v14, s{sT0}, v15
        s_lshr_b32 s{sT0}, s{sS}, 3
        s_lshl3_add_u32 s{sT0}, s{sT0}, s{sG}
        s_min_u32 s{sT0}, s{sT0}, 27
        s_and_b32 s{sT2}, s{sS}, 7
        s_lshl3_add_u32 s{sT1}, s{sT0}, s{sT2}
        s_lshl_b32 s{sT1}, s{sT1}, 11
        s_add_u32 s{sT1}, s{sT1}, {GP - 16*128}
        v_add_u32 v15, s{sT1}, v15
        v_cmp_lt_u32 vcc, 15, v0
        v_cndmask_b32 v14, v14, v15, vcc
        s_and_b32 s{sT1}, s{sS}, 15
        s_lshl4_add_u32 s{sT1}, s{sG}, s{sT1}
        s_lshl_b32 s{sT1}, s{sT1}, 7
        s_add_u32 s{sT1}, s{sT1}, {ML}
        v_writelane_b32 v14, s{sT1}, 32
        s_and_b32 s{sT2}, s{sS}, 1
        s_lshl1_add_u32 s{sT1}, s{sT0}, s{sT2}
        s_lshl_b32 s{sT1}, s{sT1}, 7
        s_add_u32 s{sT1}, s{sT1}, {ST}
        v_writelane_b32 v14, s{sT1}, 33
        s_lshl1_add_u32 s{sT1}, s{sG}, s{sT2}
        s_lshl_b32 s{sT1}, s{sT1}, 7
        s_add_u32 s{sT1}, s{sT1}, {FL2}
        v_writelane_b32 v14, s{sT1}, 34""")
    def warmload():
        if l2warm:
            a(f"""s_mov_b32 exec_hi, 7
            s_mov_b32 exec_lo, {hex(wmask)}
            buffer_load_dword v17, v14, s[{sWS}:{sWS+3}], 0 offen {wpol}
            s_mov_b64 exec, -1""")
    if not wlate:
        warmload()
    if ack:
        a("s_waitcnt vmcnt(0)")
    if qdelay:
        a(f"s_sleep {qdelay}")
    if qdual and not afirst:
        a(f"""s_add_u32 s{sA}, s{sA}, {QB - QP}
        s_add_u32 s{sC}, s{sC}, {QB - QP}""")
    stamp(7)
    G = WQ

    def qloads():
        for kc in range(4):
            for h in range(2):
                o = kc * 2048 + h * 1024
                r = G + 4 * (kc * 2 + h)
                a(f"buffer_load_dwordx4 v[{r}:{r+3}], v{vXS}, s[{sWS}:{sWS+3}], s{sA if o < 4096 else sC} offen offset:{o % 4096} sc1")
    if n2:
        qloads()
        a("s_barrier")
        if wlate:
            a("v_mov_b32 v16, v14")
            warmload()
            a("s_waitcnt vmcnt(1)\ns_branch L_qchk2")
        else:
            a("s_branch L_qchk")
    a("L_qpoll:")
    qloads()
    a("L_qchk:\ns_waitcnt vmcnt(0)\nL_qchk2:")
    tagcheck(14, [G + 4 * k + 3 for k in range(8)], [vT3] * 8)
    if qdual:
        a(f"""s_cbranch_vccz L_qgo
        s_add_u32 s{sCNT}, s{sCNT}, 1
        s_cmp_eq_u32 s{sCNT}, 1
        s_cselect_b32 s{sT0}, {0 if afirst else QP - QB}, 0
        s_cmp_eq_u32 s{sCNT}, {na + 1}
        s_cselect_b32 s{sT0}, {QB - QP}, s{sT0}
        s_add_u32 s{sA}, s{sA}, s{sT0}
        s_add_u32 s{sC}, s{sC}, s{sT0}
        s_cmp_lt_u32 s{sCNT}, {SPIN_LIMIT}
        s_cbranch_scc1 L_qpoll
        L_qgo:""")
    else:
        poll_tail("L_qpoll", "L_qgo")
    stamp(5)
    for h in range(2):
        r = G + 4 * h
        a(f"v_xor_b32 v15, v{r+2}, v13" if h == 0 else f"v_bitop3_b32 v15, v15, v{r+2}, v13 bitop3:0xf6")
        for kc in range(1, 4):
            q = G + 4 * (kc * 2 + h)
            a(f"v_bitop3_b32 v15, v15, v{q+2}, v13 bitop3:0xf6")
            a(f"v_pk_add_f32 v[{r}:{r+1}], v[{r}:{r+1}], v[{q}:{q+1}]")
            a(f"v_pk_add_f32 v[{r+2}:{r+3}], v[{r+2}:{r+3}], v[{q+2}:{q+3}]")
        a(f"v_cvt_pk_bf16_f32 v{r}, v{r}, v{r+1}")
        a(f"v_cvt_pk_bf16_f32 v{r+1}, v{r+2}, v{r+3}")
        a(f"ds_write_b64 v7, v[{r}:{r+1}] offset:{L_Q + 512*h}")
    a(f"""v_and_b32 v15, s{sFF}, v15
    v_cmp_ne_u32 vcc, 0, v15
    s_cmp_eq_u64 vcc, 0
    s_cselect_b32 s{sA}, 1, 0
    v_mov_b32 v14, s{sA}
    v_mov_b32 v15, {L_FLAG}
    ds_write_b32 v15, v14""")
    if stamps:
        stamp(6)
        a(f"s_waitcnt lgkmcnt(0)\nv_mov_b32 v15, {L_STQ}")
        for k in (0, 1, 3, 4, 5, 7, 15):
            a(f"v_mov_b32 v14, s{sSTAMP0+2*k if k < 15 else sCNT}\nds_write_b32 v15, v14 offset:{4*k}")
    a(f"""s_waitcnt lgkmcnt(0)
    s_barrier
    s_endpgm""")

    inK[0] = 'K'
    vKo, vVo = 4, 5
    KD, VD, WD = 32, 64, 96
    W2D = WD + 32
    vM, vPM, vT, vWo, vI = 8, 12, 24, 14, 15
    vQa, vOa, vMa, vMr = 16, 17, 18, 23
    vWA = 142
    a(f""".p2align {kalign}
    L_kreg:
    s_load_dwordx2 s[{pWO}:{pWO+1}], s[0:1], 32
    s_load_dwordx4 s[{pW1}:{pW1+3}], s[0:1], 48
    s_load_dwordx4 s[{pW2}:{pW2+3}], s[0:1], 64
    v_and_b32 v0, 63, v0
    s_and_b32 s{sG}, s2, 7
    s_lshr_b32 s{sS}, s2, 3
    s_sub_u32 s{sW}, s3, 1
    v_and_b32 v2, 15, v0
    v_lshrrev_b32 v3, 4, v0
    v_and_b32 v6, 7, v2
    v_lshlrev_b32 v{vKo}, 8, v6
    v_lshrrev_b32 v6, 3, v2
    v_lshl_add_u32 v{vKo}, v6, 6, v{vKo}
    v_lshl_add_u32 v{vKo}, v3, 4, v{vKo}
    v_lshlrev_b32 v{vVo}, 10, v3
    v_lshl_add_u32 v{vVo}, v2, 4, v{vVo}
    s_lshl_b32 s{sA}, s{sG}, 23
    s_lshl_b32 s{sB}, s{sS}, 12
    s_add_u32 s{sA}, s{sA}, s{sB}
    s_lshl_b32 s{sB}, s{sW}, 17
    s_add_u32 s{sA}, s{sA}, s{sB}
    s_add_u32 s{sA}, s{sA}, {28672*256}
    s_add_u32 s{sB}, s{sA}, 0x80000
    s_mov_b32 s{sV+3}, 0x20000
    s_lshl_b32 s{sV+2}, 1, 26
    s_waitcnt lgkmcnt(0)
    s_load_dword s{sEP}, s[{sWS}:{sWS+1}], {EPOCH}
    s_mov_b32 s{sV}, s{sK+2}
    s_mov_b32 s{sV+1}, s{sK+3}
    s_mov_b32 s{sK+2}, s{sV+2}
    s_mov_b32 s{sK+3}, s{sV+3}
    s_mov_b32 s{sWS+3}, s{sV+3}
    s_lshl_b32 s{sWS+2}, 1, 28""")
    if tlb:
        a(f"""s_load_dword s{sT0}, s[{sV}:{sV+1}], s{sA}
        s_lshl_b32 s{sC}, s{sG}, 19
        s_load_dword s{sT0}, s[{pWO}:{pWO+1}], s{sC}
        s_load_dword s{sT0}, s[{pW1}:{pW1+1}], 0
        s_load_dword s{sT0}, s[{pW3}:{pW3+1}], 0
        s_load_dword s{sT0}, s[{pW2}:{pW2+1}], 0
        s_load_dword s{sT0}, s[{pW2+2}:{pW2+3}], 0""")

    def kvload(n):
        if n < 8:
            tau, eta, lam = n >> 2, (n >> 1) & 1, n & 1
            r = KD + n * 4
            a(f"buffer_load_dwordx4 v[{r}:{r+3}], v{vKo}, s[{sK}:{sK+3}], s{sA+tau} offen offset:{eta*2048+lam*128} nt")
        else:
            k = n - 8
            tau, i = divmod(k, 4)
            r = VD + k * 4
            a(f"buffer_load_dwordx4 v[{r}:{r+3}], v{vVo}, s[{sV}:{sV+3}], s{sA+tau} offen offset:{i*256} nt")
    if b0pos == 0:
        for n in range(win0):
            if n == pre: a("s_barrier")
            kvload(n)
        if not dbg: stamp(1)
    else:
        for n in range(pre):
            kvload(n)
    a(f"""s_mov_b32 s{sX+3}, s{sV+3}
    s_movk_i32 s{sX+2}, 1024
    s_mov_b32 s{sOUT}, s{pW2+2}
    s_mov_b32 s{sOUT+1}, s{pW2+3}
    s_movk_i32 s{sOUT+2}, 1024
    s_mov_b32 s{sOUT+3}, s{sV+3}
    s_mov_b32 s{sFF}, 0xff
    s_mov_b32 s{sHI}, 0xffff0000
    s_mov_b32 s{sCNT}, 0
    s_mov_b32 s{sL2E}, {hex(LOG2E)}""")
    build_masks(vM)
    a(f"""v_or_b32 v{vPM}, v{vM}, v{vM+2}
    v_or_b32 v{vPM+1}, v{vM+1}, v{vM+3}
    v_cmp_gt_u32 vcc, 8, v2""")
    for i in range(4):
        a(f"v_cndmask_b32 v{vM+i}, 0, v{vM+i}, vcc")
    a(f"""v_and_b32 v{vI}, 1, v3
    v_lshlrev_b32 v{vI}, 1, v{vI}
    v_lshrrev_b32 v6, 1, v3
    v_add_u32 v{vI}, v{vI}, v6
    s_and_b32 s{sKC}, s{sS}, 3
    s_lshr_b32 s{sC}, s{sS}, 2
    s_lshl2_add_u32 s{sT3}, s{sG}, s{sC}   ; H (O role)
    s_sub_u32 s{sCB}, s{sC}, 4
    s_lshl_b32 s{sCB}, s{sCB}, 3
    s_add_u32 s{sCB}, s{sCB}, s{sG}
    s_cmp_lt_u32 s{sS}, 16
    s_cselect_b32 s{sROLE}, 0, 1
    s_cselect_b32 s{sCB}, 0, s{sCB}
    s_cmp_ge_u32 s{sCB}, 28
    s_cselect_b32 s{sROLE}, 2, s{sROLE}
    s_lshl2_add_u32 s{sT2}, s{sCB}, s{sKC} ; f (F role)
    v_lshrrev_b32 v6, 2, v2
    v_lshlrev_b32 v{vQa}, 8, v6
    v_and_b32 v7, 2, v2
    v_lshl_add_u32 v{vQa}, v7, 5, v{vQa}
    v_lshl_add_u32 v{vQa}, v3, 4, v{vQa}
    v_lshlrev_b32 v{vOa}, 9, v3
    v_lshl_add_u32 v{vOa}, v2, 5, v{vOa}
    s_lshl_b32 s{sC}, s{sW}, 11
    s_add_u32 s{sC}, s{sC}, {L_OW}
    v_add_u32 v{vOa}, s{sC}, v{vOa}
    v_lshlrev_b32 v{vMr}, 4, v6
    v_add_u32 v{vMr}, {L_ML}, v{vMr}
    s_lshl_b32 s{sC}, s{sW}, 2
    v_add_u32 v{vMa}, s{sC}, v{vMr}
    v_lshlrev_b32 v6, 2, v0
    v_add_u32 v6, {L_DUMMY}, v6
    v_and_b32 v7, 0x33, v0
    v_cmp_eq_u32 vcc, 0, v7
    v_cndmask_b32 v{vMa}, v6, v{vMa}, vcc
    v_lshlrev_b32 v{vWo}, 10, v{vI}
    v_lshl_add_u32 v{vWo}, v2, 4, v{vWo}  ; i(g4)*1024 + c*16
    v_lshlrev_b32 v19, 4, v0""")
    if p1:
        a("s_barrier")
        for n in range(n1):
            if n >= p1:
                a(f"s_waitcnt vmcnt({p1 - 1})")
            kvload(n)
        a("s_barrier")
        if n2:
            for n in range(n1, n1 + n2):
                kvload(n)
            a("s_barrier")
        if not dbg: stamp(1)
        for n in range(n1 + n2, 16):
            if n >= win:
                a(f"s_waitcnt vmcnt({win - 1})")
            kvload(n)
    else:
        if b0pos != 0:
            a("s_barrier")
            for n in range(pre, win0):
                kvload(n)
            if not dbg: stamp(1)
        for n in range(win0, 16):
            a(f"s_waitcnt vmcnt({min(win, n) - 1})")
            kvload(n)
    a("s_waitcnt lgkmcnt(0)")
    epoch_to_tag()
    a(f"v_lshlrev_b32 v6, 3, v0")
    for j in range(4):
        a(f"v_alignbit_b32 v{vT+j}, s{sTAG}, s{sTAG}, v6")
        if j < 3:
            a(f"v_add_u32 v6, 8, v6")
    a(f"""s_lshl1_add_u32 s{sRHO}, s{sW}, s{sS}
    s_and_b32 s{sRHO}, s{sRHO}, {7 if rho else 0}
    s_bfe_u32 s{sWOF}, s{sS}, 0x20002
    s_lshl2_add_u32 s{sWOF}, s{sG}, s{sWOF}
    s_lshl2_add_u32 s{sWOF}, s{sWOF}, s{sW}
    s_lshl3_add_u32 s{sWOF}, s{sWOF}, s{sRHO}
    s_lshl4_add_u32 s{sWOF}, s{sWOF}, s{sKC}
    s_lshl_b32 s{sWOF}, s{sWOF}, 8
    s_cmp_eq_u32 s{sROLE}, 0
    s_cselect_b32 s{pWO+2}, 0x400000, {'0x400000' if coop else '0'}
    s_cselect_b32 s{sC}, 0, {'0x4000' if coop else '0'}
    s_xor_b32 s{sWOF}, s{sWOF}, s{sC}
    s_mov_b32 s{pWO+3}, 0x20000
    s_mov_b32 s{sSTR+1}, 0""")
    WAF = f"""s_lshl_b32 s{sD}, s{sKC}, 7
    s_lshl_b32 s{sC}, s{sW}, 5
    s_add_u32 s{sD}, s{sD}, s{sC}
    s_mul_i32 s{sD}, s{sD}, 3584
    s_lshl_b32 s{sC}, s{sCB}, 7
    s_add_u32 s{sD}, s{sD}, s{sC}
    s_movk_i32 s{sC}, 3584
    v_mul_u32_u24 v6, s{sC}, v{vI}
    v_and_b32 v20, 7, v0
    v_lshl_add_u32 v6, v20, 4, v6
    v_add_u32 v6, s{sD}, v6
    v_lshl_add_u64 v[{vWA}:{vWA+1}], v[6:7], 0, s[{pW1}:{pW1+1}]
    v_lshl_add_u64 v[20:21], v[6:7], 0, s[{pW3}:{pW3+1}]
    v_cmp_gt_u32 vcc, 8, v2
    v_cndmask_b32 v{vWA}, v20, v{vWA}, vcc
    v_cndmask_b32 v{vWA+1}, v21, v{vWA+1}, vcc
    s_movk_i32 s{sSTR}, {4*3584}
"""
    a(f"""L_wad:
    s_lshl2_add_u32 s{sC}, s{sG}, s{sW}
    s_lshl_b32 s{sC}, s{sC}, 5
    s_add_u32 s{sC}, s{sC}, s{sS}
    s_lshl_b32 s{sA}, s{sC}, 9
    s_add_u32 s{sA}, s{sA}, {OP}
    s_lshl_b32 s{sB}, s{sC}, 4
    s_add_u32 s{sB}, s{sB}, {ML}
    s_lshl_b32 s{sC}, s{sW}, 4
    s_add_u32 s{sC}, s{sC}, {L_ML}
    v_mov_b32 v22, s{sC}
    s_lshl_b32 s{sC}, s{sW}, 9
    s_add_u32 s{sC}, s{sC}, {L_OW}
    v_lshl_add_u32 v1, v0, 4, s{sC}
    v_mov_b32 v6, {L_FLAG}
    v_mov_b32 v20, {hex(SCALE)}""")
    vMo_, vGo_, vTo_ = 136, 137, 138
    a(f"""v_lshrrev_b32 v6, 3, v0
    v_and_b32 v7, 3, v0
    v_lshl_add_u32 v{vMo_}, v6, 2, v7
    v_lshlrev_b32 v{vMo_}, 4, v{vMo_}
    v_and_b32 v7, 7, v0
    v_xor_b32 v7, s{sRHO}, v7
    v_lshlrev_b32 v{vGo_}, 11, v6
    v_lshl_add_u32 v{vGo_}, v7, 4, v{vGo_}
    v_lshlrev_b32 v7, 3, v7
    v_add_u32 v7, 24, v7
    v_alignbit_b32 v{vTo_}, s{sTAG}, s{sTAG}, v7""")
    a(f"v_mov_b32 v6, {L_FLAG}")
    wn = [0]

    def woloads(k):
        for _ in range(k):
            t = wn[0]
            a(f"buffer_load_dwordx4 v[{WD+4*t}:{WD+4*t+3}], v{vWo}, s[{pWO}:{pWO+3}], s{sWOF} offen nt")
            if t < 7:
                a(f"s_xor_b32 s{sWOF}, s{sWOF}, {hex((t ^ (t + 1)) << 12)}")
            wn[0] += 1

    def wloads(k):
        for _ in range(k):
            t = wn[0]
            a(f"global_load_dwordx4 v[{WD+4*t}:{WD+4*t+3}], v[{vWA}:{vWA+1}], off nt")
            if t < 7:
                a(f"v_lshl_add_u64 v[{vWA}:{vWA+1}], s[{sSTR}:{sSTR+1}], 0, v[{vWA}:{vWA+1}]")
            wn[0] += 1
    def rloads(k):
        if k == 0:
            return
        if not fearly:
            woloads(k)
            return
        n0 = wn[0]
        l1 = a.label("L_rf"); l2 = a.label("L_rd")
        a(f"s_cmp_eq_u32 s{sROLE}, 1\ns_cbranch_scc1 {l1}")
        woloads(k)
        a(f"s_branch {l2}\n{l1}:")
        wn[0] = n0
        wloads(k)
        a(f"{l2}:")
    nwm = 0
    if owarm is not None:
        nwm = 1
        a(f"""s_lshl2_add_u32 s{sC}, s{sT3}, s{sKC}
        s_lshl_b32 s{sD}, s{sC}, 12
        s_add_u32 s{sD}, s{sD}, {OP}
        s_lshl_b32 s{sT0}, s{sW}, 7
        s_add_u32 s{sD}, s{sD}, s{sT0}
        v_lshlrev_b32 v7, 9, v0
        v_add_u32 v7, s{sD}, v7
        s_lshl_b32 s{sC}, s{sC}, 7
        s_add_u32 s{sC}, s{sC}, {ML}
        v_writelane_b32 v7, s{sC}, 8
        s_cmp_eq_u32 s{sROLE}, 0
        s_cselect_b32 s{sC}, 0, 0x10000000
        s_mov_b64 exec, 0x1ff
        buffer_load_dword v139, v7, s[{sWS}:{sWS+3}], s{sC} offen {owarm}
        s_mov_b64 exec, -1""")
    if True:
        a(f"v_mov_b32 v{vWA}, 0\nv_mov_b32 v{vWA+1}, 0\ns_cmp_lg_u32 s{sROLE}, 1\ns_cbranch_scc1 L_nwaf\nv_mov_b32 v7, 0")
        a(WAF)
        a(f"v_mov_b32 v6, {L_FLAG}\nv_mov_b32 v20, {hex(SCALE)}\nL_nwaf:")
    if wwait:
        for _ in range(wpre):
            a(f"s_waitcnt vmcnt({win - 1})")
            rloads(1)
    else:
        rloads(wpre)
    if tv: a("s_waitcnt vmcnt(0)")
    if not dbg: stamp(2)
    a("s_barrier")
    stamp(3)
    B0, SD = 144, 152
    a(f"""ds_read_b128 v[{B0}:{B0+3}], v{vQa} offset:{L_Q}
    ds_read_b128 v[{B0+4}:{B0+7}], v{vQa} offset:{L_Q+128}
    ds_read_b32 v6, v6
    s_waitcnt vmcnt({8 + wpre + nwm})""")
    rloads(spr[0])
    a("s_waitcnt lgkmcnt(0)")
    for lam in range(2):
        for te in range(4):
            r = KD + (te * 2 + lam) * 4
            d = SD + te * 4
            c = "0" if lam == 0 else f"v[{d}:{d+3}]"
            a(f"v_mfma_f32_16x16x32_bf16 v[{d}:{d+3}], v[{r}:{r+3}], v[{B0+4*lam}:{B0+4*lam+3}], {c}")
    rloads(spr[1])
    a(f"v_readfirstlane_b32 s{sCOL}, v6")
    for tau in range(2):
        for i in range(4):
            a(f"v_permlane32_swap_b32 v{SD+8*tau+i}, v{SD+8*tau+4+i}")
    Sx = [SD + 8 * tau + i for tau in range(2) for i in range(4)]
    for s in Sx:
        dpp("add_f32", s, s + 4, s, "quad_perm:[2,3,2,3]")
    P2 = [Sx[0], Sx[2], Sx[4], Sx[6]]
    for s in P2: a(f"v_cvt_pk_bf16_f32 v{s+1}, v{s}, v{s+1}")
    for s in P2: a(f"v_lshlrev_b32 v{s}, 16, v{s+1}\nv_and_b32 v{s+1}, s{sHI}, v{s+1}")
    for s in P2: a(f"v_pk_mul_f32 v[{s}:{s+1}], v[{s}:{s+1}], v[20:21] op_sel_hi:[1,0]")
    for s in P2: a(f"v_cvt_pk_bf16_f32 v{s+1}, v{s}, v{s+1}")
    for s in P2: a(f"v_lshlrev_b32 v{s}, 16, v{s+1}\nv_and_b32 v{s+1}, s{sHI}, v{s+1}")
    a(f"""v_max3_f32 v28, v{Sx[0]}, v{Sx[1]}, v{Sx[2]}
    v_max3_f32 v29, v{Sx[3]}, v{Sx[4]}, v{Sx[5]}
    v_max3_f32 v28, v{Sx[6]}, v{Sx[7]}, v28
    v_max_f32 v28, v28, v29
    v_mov_b32 v29, v28
    v_permlane32_swap_b32 v28, v29
    v_max_f32 v28, v28, v29
    v_mov_b32 v29, v28
    v_permlane16_swap_b32 v28, v29
    v_max_f32 v28, v28, v29
    ds_write_b32 v{vMa}, v28""")
    a(f"""s_waitcnt lgkmcnt(0)
    s_barrier
    ds_read_b128 v[28:31], v{vMr}""")
    rloads(spr[2])
    a("s_waitcnt lgkmcnt(0)")
    if dbg: stamp(1)
    a(f"""    v_max3_f32 v28, v28, v29, v30
    v_max_f32 v28, v28, v31
    v_mul_f32 v20, s{sL2E}, v28""")
    for k in range(8):
        a(f"v_fma_f32 v{Sx[k]}, v{Sx[k]}, s{sL2E}, -v20")
    for k in range(8):
        a(f"v_exp_f32 v{Sx[k]}, v{Sx[k]}")
    a(f"""v_pk_add_f32 v[20:21], v[{Sx[0]}:{Sx[1]}], v[{Sx[2]}:{Sx[3]}]
    v_pk_add_f32 v[28:29], v[{Sx[4]}:{Sx[5]}], v[{Sx[6]}:{Sx[7]}]
    v_pk_add_f32 v[20:21], v[20:21], v[28:29]
    v_add_f32 v20, v20, v21
    v_mov_b32 v21, v20
    v_permlane32_swap_b32 v20, v21
    v_add_f32 v20, v20, v21
    v_mov_b32 v21, v20
    v_permlane16_swap_b32 v20, v21
    v_add_f32 v20, v20, v21
    ds_write_b32 v{vMa}, v20 offset:64""")
    XR = [SD + 4, SD + 6, SD + 12, SD + 14, B0, B0 + 2, B0 + 4, B0 + 6]
    for k in range(8):
        a(f"v_cvt_pk_bf16_f32 v{XR[k]+1}, v{Sx[k]}, v{Sx[k]}")
    for k in range(8):
        dpp("and_b32", XR[k], XR[k] + 1, vPM, "quad_perm:[0,0,0,0]")
    for k in range(8):
        dpp("and_b32", XR[k] + 1, XR[k] + 1, vPM + 1, "quad_perm:[0,0,0,0]")
    a(f"""v_mov_b32 v30, s{sTAG}
    v_mov_b32 v31, s{sTAG}""")
    if dbg: stamp(2)
    a(f"""s_waitcnt lgkmcnt(0)
    s_barrier""")
    if dbg: stamp(13)
    a(f"""ds_read_b128 v[40:43], v22
    ds_read_b128 v[44:47], v22 offset:64""")
    rloads(spr[3])
    assert wn[0] == (0 if wolate else 4 if coop else 8)
    nw_ = wn[0]
    a(f"""s_mov_b64 exec, 1
    s_waitcnt lgkmcnt(0)
    v_max3_f32 v28, v40, v41, v42
    v_max_f32 v28, v28, v43
    v_pk_add_f32 v[44:45], v[44:45], v[46:47]
    v_add_f32 v29, v44, v45""")
    if dbg: stamp(14)
    pub_store(28, 19, sB)
    a("s_mov_b64 exec, -1")
    stamp(4)
    OA = KD
    for k in range(8):
        a(f"s_waitcnt vmcnt({7 - k + 1 + nw_ + nwm})")
        r = VD + k * 4
        for u in range(2):
            d = OA + 4 * u
            c = "0" if k == 0 else f"v[{d}:{d+3}]"
            a(f"v_mfma_f32_16x16x16_bf16 v[{d}:{d+3}], v[{XR[k]}:{XR[k]+1}], v[{r+2*u}:{r+2*u+1}], {c}")
    if fmid:
        a(f"s_cmp_lg_u32 s{sROLE}, 1\ns_cbranch_scc1 L_nfm")
        n0 = wn[0]; wn[0] = 0
        wloads(fmid)
        wn[0] = n0
        a("L_nfm:")
    stamp(5)
    if wodiag:
        a("s_waitcnt vmcnt(1)")
        stamp(14)
    a(f"""ds_write_b128 v{vOa}, v[{OA}:{OA+3}]
    ds_write_b128 v{vOa}, v[{OA+4}:{OA+7}] offset:16
    s_waitcnt lgkmcnt(0)
    s_barrier
    s_mov_b32 exec_hi, 0""")
    for w in range(4):
        a(f"ds_read_b128 v[{48+4*w}:{48+4*w+3}], v1 offset:{2048*w}")
    sum4(48)
    a(f"v_bfi_b32 v51, s{sFF}, v{vT+3}, v51")
    pub_store(48, 19, sA)
    a("s_mov_b32 exec_hi, -1")
    stamp(6)
    a(f"s_cmp_eq_u32 s{sROLE}, 0\ns_cbranch_scc1 L_orole")
    GD, GE = 32, 64
    vGo, vMo = vGo_, vMo_
    AS, DD, RR = 84, 92, 80

    def gemv(src, n, wbase, bank, dreg, bc=lambda t: t, after=None):
        def sel(t):
            s = AS + 4 * (t & 1)
            for i in range(4):
                dpp("and_b32", s + i, src, vM + i, f"row_newbcast:{bc(t)}", bm=bank)
        sel(0)
        for t in range(n):
            if t < n - 1:
                sel(t + 1)
            s = AS + 4 * (t & 1)
            c = "0" if t == 0 else f"v[{dreg}:{dreg+3}]"
            a(f"v_mfma_f32_16x16x32_bf16 v[{dreg}:{dreg+3}], v[{s}:{s+3}], v[{wbase+4*t}:{wbase+4*t+3}], {c}")

    def masked_poll(name, loads, acc, regs, tags, quad=True, pre=None):
        a(f"{name}:\ns_waitcnt vmcnt(0)")
        tagcheck(acc, regs, tags)
        a(f"s_cbranch_vccz {name}_go")
        if quad:
            dpp("or_b32", acc, acc, acc, "quad_perm:[1,0,3,2]")
            dpp("or_b32", acc, acc, acc, "quad_perm:[2,3,0,1]")
            a(f"v_cmp_ne_u32 vcc, 0, v{acc}")
        a("s_mov_b64 exec, vcc")
        loads()
        a(f"""s_mov_b64 exec, -1
        s_add_u32 s{sCNT}, s{sCNT}, 1
        s_cmp_lt_u32 s{sCNT}, {SPIN_LIMIT}
        s_cbranch_scc1 {name}
        s_waitcnt vmcnt(0)
        {name}_go:""")

    def xflag_store(base):
        a(f"""s_lshl_b32 s{sT1}, s{sG}, 7
        s_add_u32 s{sT1}, s{sT1}, {base}
        v_lshlrev_b32 v5, 10, v0
        s_mov_b64 exec, 0xff
        buffer_store_dword v30, v5, s[{sWS}:{sWS+3}], s{sT1} offen sc1
        s_mov_b64 exec, -1""")

    def xflag_poll(name, base, vo, tmp):
        a(f"""s_lshl_b32 s{sT1}, s{sG}, 10
        s_add_u32 s{sT1}, s{sT1}, {base}
        {name}:
        buffer_load_dword v{tmp}, v{vo}, s[{sWS}:{sWS+3}], s{sT1} offen sc1
        s_waitcnt vmcnt(0)
        v_cmp_ne_u32 vcc, s{sTAG}, v{tmp}""")
        poll_tail(name, name + "_go")

    def x2store():
        a("s_mov_b64 exec, 1")
        pub_store(30, 19, sHA, n=1)
        a("s_mov_b64 exec, -1")

    def oloads(G):
        for u in range(4):
            a(f"buffer_load_dwordx4 v[{G+4*u}:{G+4*u+3}], v{vGo}, s[{sWS}:{sWS+3}], s{sA} offen offset:{512*u} sc1")

    def ochain(G):
        for i in range(4):
            dpp("mul_f32", RR + i, 52, G + i, "quad_perm:[0,0,0,0]")
        for u in range(1, 4):
            for i in range(4):
                dpp("fmac_f32", RR + i, 52, G + 4 * u + i, f"quad_perm:[{u},{u},{u},{u}]")
    inK[0] = 'F'
    a(f"""L_frole:
    {'s_barrier' if fbar else ''}
    s_cmp_eq_u32 s{sROLE}, 2
    s_cbranch_scc1 L_now13
    {'s_sleep %d' % fwdelay if fwdelay else ''}""")
    wn[0] = fmid
    wloads(8 - fmid)
    a("L_now13:")
    a(f"""s_lshl_b32 s{sD}, s{sKC}, 8
    s_lshl_b32 s{sB}, s{sW}, 6
    s_add_u32 s{sD}, s{sD}, s{sB}
    v_and_b32 v7, 7, v0
    v_lshl_add_u32 v6, v7, 2, v{vI}
    v_lshlrev_b32 v6, 1, v6
    buffer_load_short_d16_hi v22, v6, s[{sX}:{sX+3}], s{sD} offen
    v_lshlrev_b32 v28, 7, v7
    v_mov_b32 v23, 0x3f803f80
    v_and_b32 v7, 1, v2
    v_lshlrev_b32 v7, 4, v7
    v_mov_b32 v6, 0xffff
    v_lshlrev_b32 v6, v7, v6
    v_and_b32 v23, v23, v6
    v_bfe_u32 v7, v2, 1, 2""")
    for i in range(4):
        a(f"v_cmp_eq_u32 vcc, {i}, v7")
        a(f"v_cndmask_b32 v{AS+i}, 0, v23, vcc")
        a(f"v_mov_b32 v{AS+4+i}, v{AS+i}")
    a(f"""s_lshl_b32 s{sA}, s{sKC}, 14
    s_lshl_b32 s{sB}, s{sW}, 7
    s_add_u32 s{sA}, s{sA}, s{sB}
    s_add_u32 s{sA}, s{sA}, {HP}
    v_lshrrev_b32 v6, 3, v0
    v_and_b32 v7, 7, v0
    v_lshlrev_b32 v20, 11, v6
    v_lshl_add_u32 v20, v7, 4, v20
    s_lshl2_add_u32 s{sT0}, s{sT2}, s{sW}
    s_lshl_b32 s{sB}, s{sT0}, 4
    s_add_u32 s{sB}, s{sB}, {ST}
    v_and_b32 v5, 3, v0
    v_lshlrev_b32 v5, 4, v5
    v_bfe_u32 v4, v0, 2, 1
    v_lshl_add_u32 v5, v4, 13, v5
    v_bfe_u32 v4, v0, 4, 1
    v_lshl_add_u32 v5, v4, 12, v5
    v_bfe_u32 v4, v0, 3, 1
    v_lshl_add_u32 v5, v4, 7, v5
    v_bfe_u32 v4, v0, 5, 1
    v_lshl_add_u32 v5, v4, 6, v5
    s_lshl_b32 s{sC}, s{sCB}, 14
    s_and_b32 s{sD}, s{sT0}, 15
    s_lshl_b32 s{sD}, s{sD}, 8
    s_add_u32 s{sC}, s{sC}, s{sD}
    s_add_u32 s{sC}, s{sC}, {GP}""")
    a(f"""s_bfe_u32 s{sT0}, s{sS}, 0x20002
    s_and_b32 s{sT1}, s{sG}, 1
    {('s_lshl2_add_u32 s%d, s%d, s%d' % (sT0, sT1, sT0)) if fp2 else ('s_lshl1_add_u32 s%d, s%d, s%d' % (sT0, sT0, sT1))}
    s_lshr_b32 s{sT1}, s{sG}, 2
    s_lshl3_add_u32 s{sT0}, s{sT1}, s{sT0}      ; n>>1
    s_bfe_u32 s{sT1}, s{sG}, 0x10001            ; n&1
    s_lshl1_add_u32 s{sRN}, s{sT0}, s{sT1}      ; n
    s_lshl1_add_u32 s{sT1}, s{sKC}, s{sT1}
    s_lshl4_add_u32 s{sHA}, s{sT1}, s{sT0}      ; G
    s_lshl_b32 s{sXO}, s{sKC}, 5
    s_add_u32 s{sXO}, s{sXO}, s{sRN}
    s_lshl_b32 s{sXO}, s{sXO}, 3
    s_lshl_b32 s{sT0}, s{sHA}, 3
    v_lshlrev_b32 v132, 1, v{vI}""")
    for j in range(4):
        a(f"s_add_u32 s{sT3}, s{sT0}, {8*j}")
        a(f"v_mov_b32 v7, s{sT3}")
        a(f"v_alignbit_b32 v{128+j}, s{sTAG}, s{sTAG}, v7")
    if stamps and not fsleep:
        a("s_waitcnt vmcnt(0)")
        stamp(11)
    if xfl and fsleep:
        a(f"""s_lshl_b32 s{sT1}, s{sG}, 10
        s_add_u32 s{sT1}, s{sT1}, {XF1}
        s_sleep {fsleep}
        buffer_load_dword v29, v28, s[{sWS}:{sWS+3}], s{sT1} offen sc1
        s_waitcnt vmcnt(0)""")
        stamp(11)
        a(f"""v_cmp_ne_u32 vcc, s{sTAG}, v29
        s_cbranch_vccz L_fx2""")
    if xfl:
        xflag_poll("L_fx1", XF1, 28, 29)
        if fdelay: a(f"s_sleep {fdelay}")
        a("L_fx2:")
    stamp(7)
    HD = 52

    def hloads():
        for u in range(4):
            a(f"buffer_load_dwordx4 v[{HD+4*u}:{HD+4*u+3}], v20, s[{sWS}:{sWS+3}], s{sA} offen offset:{512*u} sc1")
    hloads()
    masked_poll("L_gpoll", hloads, 6, [HD + 4 * u + 3 for u in range(4)], [vT + 3] * 4)
    stamp(8)
    a(f"""v_pk_add_f32 v[{HD}:{HD+1}], v[{HD}:{HD+1}], v[{HD+4}:{HD+5}]
    v_pk_add_f32 v[{HD+2}:{HD+3}], v[{HD+2}:{HD+3}], v[{HD+6}:{HD+7}]
    v_pk_add_f32 v[{HD+8}:{HD+9}], v[{HD+8}:{HD+9}], v[{HD+12}:{HD+13}]
    v_pk_add_f32 v[{HD+10}:{HD+11}], v[{HD+10}:{HD+11}], v[{HD+14}:{HD+15}]
    v_pk_add_f32 v[{HD}:{HD+1}], v[{HD}:{HD+1}], v[{HD+8}:{HD+9}]
    v_pk_add_f32 v[{HD+2}:{HD+3}], v[{HD+2}:{HD+3}], v[{HD+10}:{HD+11}]
    v_and_b32 v22, s{sHI}, v22""")
    xreduce4(HD)
    dpp("add_f32", HD, HD, HD, "row_ror:8")
    round_bf16(HD, f"v{HD}")
    a(f"""v_add_f32 v{HD}, v22, v{HD}
    v_cvt_pk_bf16_f32 v{HD}, v{HD}, v{HD}
    v_and_b32 v22, s{sHI}, v{HD}
    s_cmp_eq_u32 s{sROLE}, 2
    s_cbranch_scc1 L_red
    v_readfirstlane_b32 s{sT0}, v22""")
    a(f"""v_subrev_f32 v6, s{sT0}, v22
    v_mul_f32 v7, v6, v6""")
    for k in (4, 2, 1):
        dpp("add_f32", 6, 6, 6, f"row_ror:{k}")
        dpp("add_f32", 7, 7, 7, f"row_ror:{k}")
    for ctl, rm in (("row_bcast:15", "0xa"), ("row_bcast:31", "0xc")):
        dpp("add_f32", 6, 6, 6, ctl, rm=rm)
        dpp("add_f32", 7, 7, 7, ctl, rm=rm)
    a(f"""v_mul_f32 v28, 0x3d000000, v6
    v_fma_f32 v29, -v28, v6, v7
    v_add_f32 v28, s{sT0}, v28
    v_mov_b32 v4, 0
    s_mov_b32 exec_lo, 0
    s_mov_b32 exec_hi, 0x80000000""")
    pub_store(28, 4, sB)
    a("s_mov_b64 exec, -1")
    stamp(9)
    gemv(HD, 8, WD, "0x3", DD)
    a(f"v_bfi_b32 v{DD+3}, s{sFF}, v{vT+3}, v{DD+3}")
    pub_store(DD, 5, sC)
    stamp(10)
    a("s_branch L_red")
    a(f".p2align {oalign}\nL_orole:")
    a(f"""s_lshl_b32 s{sA}, s{sT3}, 14
    s_add_u32 s{sA}, s{sA}, {OP}
    s_lshl_b32 s{sB}, s{sW}, 7
    s_add_u32 s{sA}, s{sA}, s{sB}
    s_lshl_b32 s{sB}, s{sT3}, 9
    s_add_u32 s{sB}, s{sB}, {ML}""")

    inK[0] = 'O'
    wn[0] = nw_
    if coop:
        a("s_barrier")
        woloads(4)
    if wolate:
        a("s_barrier")
        woloads(8)
        if odelay: a(f"s_sleep {odelay}")
    if stamps and not wolate:
        a(f"s_waitcnt vmcnt({6 if coop else 2})")
        stamp(14)
        a("s_waitcnt vmcnt(0)")
        stamp(1)
    a(f"""L_mpoll:
    buffer_load_dwordx4 v[52:55], v{vMo}, s[{sWS}:{sWS+3}], s{sB} offen sc1""")
    oloads(GD)
    a(f"""s_waitcnt vmcnt(4)
    v_cmp_ne_u32 vcc, s{sTAG}, v55""")
    poll_tail("L_mpoll", "L_mgo")
    if not mret: oloads(GE)
    stamp(13)
    if xfl and xpos == 13:
        a(f"""s_lshl2_add_u32 s{sT0}, s{sS}, s{sW}
        s_cmp_lg_u32 s{sT0}, 3
        s_cbranch_scc1 L_nx1""")
        xflag_store(XF1)
        a("L_nx1:")
    a(f"""s_lshl_b32 s{sC}, s{sW}, 10
    s_add_u32 s{sC}, s{sC}, {L_RED}
    v_lshl_add_u32 v22, v0, 4, s{sC}
    v_and_b32 v7, 1, v0
    v_lshlrev_b32 v7, 4, v7
    v_lshrrev_b32 v1, 1, v0
    v_add_u32 v7, v7, v1
    v_lshlrev_b32 v7, 4, v7""")
    dpp("max_f32", 6, 52, 52, "quad_perm:[1,0,3,2]")
    dpp("max_f32", 6, 6, 6, "quad_perm:[2,3,0,1]")
    wave_red(6, sT0, op="max", steps=(8,))
    a(f"""v_subrev_f32 v52, s{sT0}, v52
    v_mul_f32 v52, s{sL2E}, v52
    v_exp_f32 v52, v52
    v_mul_f32 v6, v52, v53""")
    dpp("add_f32", 6, 6, 6, "quad_perm:[1,0,3,2]")
    dpp("add_f32", 6, 6, 6, "quad_perm:[2,3,0,1]")
    wave_red(6, sT0, steps=(8,))
    a(f"""v_rcp_f32 v6, s{sT0}
    v_mul_f32 v52, v52, v6""")
    if mret:
        masked_poll("L_opoll", lambda: oloads(GD), 6, [GD + 4 * u + 3 for u in range(4)], [vTo_] * 4)
        ochain(GD)
    else:
        a("L_opoll:\ns_waitcnt vmcnt(4)")
        tagcheck(6, [GD + 4 * u + 3 for u in range(4)], [vTo_] * 4)
        a("s_cbranch_vccz L_ogo")
        oloads(GD)
        a("s_waitcnt vmcnt(4)")
        tagcheck(6, [GE + 4 * u + 3 for u in range(4)], [vTo_] * 4)
        a("s_cbranch_vccz L_oge")
        oloads(GE)
        a(f"""s_add_u32 s{sCNT}, s{sCNT}, 1
        s_cmp_lt_u32 s{sCNT}, {SPIN_LIMIT}
        s_cbranch_scc1 L_opoll
        L_oge:""")
        ochain(GE)
        a("s_branch L_oj\nL_ogo:")
        ochain(GD)
    a("L_oj:")
    stamp(7)
    if xfl and xpos == 7:
        a(f"""s_lshl2_add_u32 s{sT0}, s{sS}, s{sW}
        s_cmp_lg_u32 s{sT0}, 3
        s_cbranch_scc1 L_nx1""")
        xflag_store(XF1)
        a("L_nx1:")
    xreduce4(RR)
    dpp("add_f32", RR, RR, RR, "row_ror:8")
    a(f"v_cvt_pk_bf16_f32 v{RR}, v{RR}, v{RR}")
    gemv(RR, 8, WD, "0xf", DD)
    a(f"""s_lshl_b32 s{sA}, s{sKC}, 5
    s_add_u32 s{sA}, s{sA}, s{sT3}
    s_lshl_b32 s{sA}, s{sA}, 9
    s_add_u32 s{sA}, s{sA}, {HP}
    s_lshr_b32 s{sCB}, s{sS}, 2
    s_lshl3_add_u32 s{sCB}, s{sCB}, s{sG}
    s_lshl2_add_u32 s{sT2}, s{sCB}, s{sKC}
    ds_write_b128 v22, v[{DD}:{DD+3}]
    s_waitcnt lgkmcnt(0)
    s_barrier""")
    stamp(8)
    if xfl and xpos == 8:
        a(f"""s_lshl2_add_u32 s{sT0}, s{sS}, s{sW}
        s_cmp_lg_u32 s{sT0}, 3
        s_cbranch_scc1 L_nx1""")
        xflag_store(XF1)
        a("L_nx1:")
    a(f"""s_cmp_lg_u32 s{sW}, 0
    s_cbranch_scc1 L_onot0
    s_mov_b32 exec_hi, 0""")
    for w in range(4):
        a(f"ds_read_b128 v[{112+4*w}:{112+4*w+3}], v7 offset:{L_RED+1024*w}")
    sum4(112)
    for j in range(4):
        a(f"v_bfi_b32 v{112+j}, s{sFF}, v{vT+j}, v{112+j}")
    a(f"""buffer_store_dwordx4 v[112:115], v19, s[{sWS}:{sWS+3}], s{sA} offen sc1
    s_mov_b32 exec_hi, -1
    L_onot0:
    s_barrier""")
    stamp(9)
    a(f"""s_cmp_ge_u32 s{sCB}, 28
    s_cbranch_scc1 L_kdone
    s_lshr_b32 s{sA}, s{sKC}, 1
    s_and_b32 s{sB}, s{sKC}, 1
    s_lshl1_add_u32 s{sA}, s{sCB}, s{sA}
    s_lshl3_add_u32 s{sA}, s{sA}, s{sB}
    s_lshl_b32 s{sA}, s{sA}, 12
    s_lshl_b32 s{sB}, s{sW}, 8
    s_add_u32 s{sA}, s{sA}, s{sB}
    s_add_u32 s{pW2}, s{pW2}, s{sA}
    s_addc_u32 s{pW2+1}, s{pW2+1}, 0""")
    for t in range(4):
        a(f"global_load_dwordx4 v[{WD+4*t}:{WD+4*t+3}], v{vWo}, s[{pW2}:{pW2+1}] nt")
        if t < 3:
            a(f"v_add_u32 v{vWo}, 0x2000, v{vWo}")
    a(f"""L_f2:
    s_lshl_b32 s{sC}, s{sCB}, 8
    s_add_u32 s{sC}, s{sC}, {ST}
    v_lshlrev_b32 v21, 4, v2
    s_lshl_b32 s{sA}, s{sT2}, 12
    s_add_u32 s{sA}, s{sA}, {GP}
    s_lshl2_add_u32 s{sB}, s{sT2}, s{sW}
    s_lshl_b32 s{sD}, s{sB}, 9
    s_add_u32 s{sD}, s{sD}, {FP}
    """)
    if fp2:
        a(f"""s_lshr_b32 s{sD}, s{sT2}, 1
        s_lshl2_add_u32 s{sD}, s{sD}, s{sW}
        s_lshl_b32 s{sD}, s{sD}, 4
        s_and_b32 s{sB}, s{sT2}, 1
        s_add_u32 s{sD}, s{sD}, s{sB}
        s_lshl_b32 s{sD}, s{sD}, 6
        s_add_u32 s{sD}, s{sD}, {FP}
        v_lshrrev_b32 v4, 2, v0
        v_and_b32 v5, 3, v0
        v_lshlrev_b32 v5, 4, v5
        v_lshl_add_u32 v20, v4, 7, v5""")
    else:
        a("v_mov_b32 v20, v19")
    a(f"""
    s_lshl4_add_u32 s{sHA}, s{sG}, s{sS}
    s_lshl2_add_u32 s{sHA}, s{sHA}, s{sW}
    s_lshl_b32 s{sHA}, s{sHA}, 2
    s_add_u32 s{sHA}, s{sHA}, {FL2}
    v_and_b32 v6, 7, v0
    v_lshlrev_b32 v6, 7, v6
    s_lshl_b32 s{sB}, s{sW}, 10
    s_add_u32 s{sB}, s{sB}, s{sA}
    buffer_load_dword v7, v6, s[{sWS}:{sWS+3}], s{sB} offen sc1
    {'s_sleep %d' % ssleep if ssleep else ''}
    L_spoll:
    buffer_load_dwordx4 v[36:39], v21, s[{sWS}:{sWS+3}], s{sC} offen sc1""")
    GU = 64

    def uloads():
        for u in range(4):
            a(f"buffer_load_dwordx4 v[{GU+4*u}:{GU+4*u+3}], v19, s[{sWS}:{sWS+3}], s{sA} offen offset:{1024*u} sc1")
    a(f"""s_waitcnt vmcnt(0)
    v_cmp_ne_u32 vcc, s{sTAG}, v39""")
    poll_tail("L_spoll", "L_sgo")
    uloads()
    if x2pos == 10:
        x2store()
    stamp(10)
    dpp("add_f32", 6, 36, 36, "row_ror:8")
    for k in (4, 2, 1):
        dpp("add_f32", 6, 6, 6, f"row_ror:{k}")
    a(f"""v_mul_f32 v6, 0x3d800000, v6
    v_sub_f32 v36, v36, v6
    v_mul_f32 v36, v36, v36
    v_fmac_f32 v37, 0x42000000, v36""")
    for k in (8, 4, 2, 1):
        dpp("add_f32", 37, 37, 37, f"row_ror:{k}")
    round_bf16(6, "v6")
    a(f"""v_mul_f32 v37, 0x3b000000, v37
    v_sub_f32 v6, 0, v6""")
    round_bf16(37, "v37")
    a(f"v_add_f32 v37, {hex(EPS)}, v37")
    round_bf16(37, "v37")
    a(f"v_sqrt_f32 v37, v37")
    round_bf16(37, "v37")
    a(f"""v_rcp_f32 v37, v37
    """)
    masked_poll("L_upoll", uloads, 7, [GU + 4 * u + 3 for u in range(4)], [vT + 3] * 4)
    if x2pos == 11:
        x2store()
    stamp(11)
    a(f"""v_pk_add_f32 v[32:33], v[{GU}:{GU+1}], v[{GU+4}:{GU+5}]
    v_pk_add_f32 v[34:35], v[{GU+2}:{GU+3}], v[{GU+6}:{GU+7}]
    v_pk_add_f32 v[{GU+8}:{GU+9}], v[{GU+8}:{GU+9}], v[{GU+12}:{GU+13}]
    v_pk_add_f32 v[{GU+10}:{GU+11}], v[{GU+10}:{GU+11}], v[{GU+14}:{GU+15}]
    v_pk_add_f32 v[32:33], v[32:33], v[{GU+8}:{GU+9}]
    v_pk_add_f32 v[34:35], v[34:35], v[{GU+10}:{GU+11}]""")
    xreduce4(32)
    dpp("fmac_f32", 32, 32, 6, "row_shl:4")
    a(f"v_mul_f32 v33, v32, v37")
    round_bf16(33, "v33")
    a(f"""v_mul_f32 v34, {hex(LOG2E | 0x80000000)}, v33
    v_exp_f32 v34, v34
    v_add_f32 v34, 1.0, v34
    v_rcp_f32 v34, v34
    v_mul_f32 v34, v33, v34""")
    round_bf16(34, "v34")
    dpp("mul_f32", 34, 33, 34, "row_shl:8")
    a(f"v_cvt_pk_bf16_f32 v34, v34, v34")
    gemv(34, 4, WD, "0xf", DD)
    a(f"s_mov_b32 exec_hi, 0")
    for j in range(4):
        a(f"v_bfi_b32 v{DD+j}, s{sFF}, v{vT+j}, v{DD+j}")
    a(f"""buffer_store_dwordx4 v[{DD}:{DD+3}], v20, s[{sWS}:{sWS+3}], s{sD} offen sc1
    s_mov_b32 exec_hi, -1""")
    if x2pos == 12:
        x2store()
    stamp(12)
    a("s_branch L_kdone")

    inK[0] = 'F'
    a("L_red:")
    if wb1 or wb2:
        a(f"""s_lshl2_add_u32 s{sT0}, s{sS}, s{sW}
        s_cmpk_lg_u32 s{sT0}, 67
        s_cbranch_scc1 L_nwb""")
        if wb2:
            a(f"""s_lshl_b32 s{sD}, s{sG}, 8
            s_add_u32 s{sD}, s{sD}, {FL2}
            s_cmp_lt_u32 s{sG}, 4
            s_cselect_b32 s{sT1}, 63, 47
            v_min_u32 v28, s{sT1}, v0
            v_lshlrev_b32 v28, 2, v28""")
            flag_poll("L_wbp", 28, sD, 29)
        a("buffer_wbl2 sc1\ns_waitcnt vmcnt(0)\nL_nwb:")
    a(f"""s_lshr_b32 s{sT0}, s{sRN}, 3
    s_cmp_lg_u32 s{sT0}, s{sW}
    s_cbranch_scc1 L_kdone
    """)
    if fp2:
        a(f"""s_lshr_b32 s{sA}, s{sHA}, 2
        s_lshl_b32 s{sA}, s{sA}, 3
        s_and_b32 s{sB}, s{sHA}, 3
        s_add_u32 s{sA}, s{sA}, s{sB}
        s_lshl_b32 s{sA}, s{sA}, 4
        v_lshrrev_b32 v6, 1, v0
        v_lshlrev_b32 v6, 12, v6
        v_and_b32 v7, 1, v0
        v_lshl_add_u32 v6, v7, 6, v6""")
    else:
        a(f"""s_lshl_b32 s{sA}, s{sHA}, 4
        v_lshlrev_b32 v6, 11, v0""")
    a(f"""s_add_u32 s{sA}, s{sA}, {FP}
    s_add_u32 s{sB}, s{sA}, {64*2048}
    s_lshl_b32 s{sD}, s{sG}, 8
    s_add_u32 s{sD}, s{sD}, {FL2}
    s_cmp_lt_u32 s{sG}, 4
    s_cselect_b32 s{sT1}, 63, 47
    v_min_u32 v28, s{sT1}, v0
    v_lshlrev_b32 v28, 2, v28
    s_and_b32 s{sT0}, s{sRN}, 7
    s_lshl_b32 s{sRN}, 0x00010001, s{sT0}""")
    for j in range(4):
        a(f"v_and_b32 v{36+j}, s{sFF}, v{128+j}")
    if rsleep: a(f"s_sleep {rsleep}")
    flag_poll("L_rx2", 28, sD, 29)
    if rdelay:
        a(f"s_sleep {rdelay}")
    stamp(14)

    def floads():
        a(f"""buffer_load_dwordx4 v[32:35], v6, s[{sWS}:{sWS+3}], s{sA} offen sc1
        s_and_b32 exec_hi, exec_hi, 0xffff
        buffer_load_dwordx4 v[36:39], v6, s[{sWS}:{sWS+3}], s{sB} offen sc1""")
    floads()
    a("s_mov_b32 exec_hi, -1")
    masked_poll("L_fpoll", floads, 7, list(range(32, 40)), [128, 129, 130, 131] * 2, quad=False)
    stamp(1)
    a(f"""v_pk_add_f32 v[32:33], v[32:33], v[36:37]
    v_pk_add_f32 v[34:35], v[34:35], v[38:39]""")
    xreduce4(32)
    for k in (8, 4, 2, 1):
        dpp("add_f32", 32, 32, 32, f"row_ror:{k}")
    round_bf16(32, "v32")
    a(f"""v_add_f32 v32, v22, v32
    v_cvt_pk_bf16_f32 v32, v32, v32
    s_mov_b32 exec_lo, s{sRN}
    s_mov_b32 exec_hi, s{sRN}
    buffer_store_short v32, v132, s[{sOUT}:{sOUT+3}], s{sXO} offen
    s_cmpk_lg_u32 s2, 128
    s_cbranch_scc1 L_noep
    s_mov_b64 exec, 1
    buffer_store_dword v30, v19, s[{sWS}:{sWS+3}], 0 offen sc1
    L_noep:""")
    stamp(2)
    if gprobe is not None:
        a(f"""s_cmpk_lg_u32 s2, 128
        s_cbranch_scc1 L_kdone
        s_memrealtime s[{sSTAMP0+4}:{sSTAMP0+5}]
        s_load_dwordx2 s[94:95], s[0:1], 80
        s_mov_b32 s96, 0
        s_mov_b32 s93, 0
        s_waitcnt lgkmcnt(0)
        s_atomic_umax s96, s[94:95], 0 glc
        s_atomic_umax s93, s[94:95], 64 glc
        s_waitcnt lgkmcnt(0)
        s_not_b32 s93, s93
        s_sub_u32 s{sA}, s96, s93
        s_lshl_b32 s{sA}, s{sA}, 2
        s_min_u32 s{sA}, s{sA}, 10000
        L_probe2:
        s_memrealtime s[{sC}:{sD}]
        s_waitcnt lgkmcnt(0)
        s_sub_u32 s{sB}, s{sC}, s{sSTAMP0+4}
        s_cmp_lt_u32 s{sB}, s{sA}
        s_cbranch_scc1 L_probe2""")
    if probe is not None:
        a(f"""s_cmpk_lg_u32 s2, 128
        s_cbranch_scc1 L_kdone
        s_memrealtime s[{sSTAMP0+4}:{sSTAMP0+5}]
        s_waitcnt lgkmcnt(0)
        s_sub_u32 s{sA}, s{sSTAMP0+2*probe}, s{sSTAMP0}
        s_lshl_b32 s{sA}, s{sA}, 2
        s_min_u32 s{sA}, s{sA}, 10000
        L_probe:
        s_memrealtime s[{sC}:{sD}]
        s_waitcnt lgkmcnt(0)
        s_sub_u32 s{sB}, s{sC}, s{sSTAMP0+4}
        s_cmp_lt_u32 s{sB}, s{sA}
        s_cbranch_scc1 L_probe""")
    a("L_kdone:")
    flush_stamps()
    a("s_endpgm")
    for s_ in slow:
        a(s_)
    a("L_end:")
    body = pad(a.text(), verbose=False)
    if al8:
        body = align(body, verbose=True)
    return single_file(body, 256, 320, LDS_BYTES, 168, sgpr=100)


if __name__ == "__main__":
    import json
    variants = json.loads(sys.argv[1]) if len(sys.argv) > 1 else {"k8": {}}
    for n, kw in variants.items():
        open(n + ".s", "w").write(gen(**kw))
        if "probe" not in kw and "gprobe" not in kw:
            open(n + "_st.s", "w").write(gen(stamps=True, **kw))
```

```python
import sys
from gl import *
from hz import pad
from al import align

EPOCH = 0
XF1 = 0x7c000
XF2 = 0x7e000
FL1 = 0x400
FL2 = 0x800
QP = 0x1000
ML = 0x11000
ST = 0x15000
GP = 0x120000
HP = 0x34000
FP = 0x44000
QB = 0x100000
ML8 = 0x1c0000
HP8 = 0x190000
OP = 0x80000
STAMPS = 0x300000
L_Q = 0
L_FLAG = 1024
L_ML = 1056
L_DUMMY = 1280
L_OW = 2304
L_RED = L_OW + 8192
L_STQ = L_RED + 4096
LDS_BYTES = L_RED + 4096 + 64
SPIN_LIMIT = 200000
LOG2E = 0x3fb8aa3b
SCALE = 0x3db504f3
EPS = 0x3727c5ac

sK, sV, sWQ, sWS, sX, sOUT = 8, 12, 16, 36, 40, 44
pWO, pW1, pW3, pW2 = 20, 24, 26, 28
sRHO, sWOF = 34, 35
sXO, sHA, sRN = 4, 5, 6
sSTR = 32
sG, sS, sW = 48, 49, 50
sTAG, sEP = 51, 52
sT0, sT1, sT2, sT3 = 53, 54, 55, 56
sCNT = 57
sFF, sHI = 58, 59
sROLE, sCOL = 60, 61
sA, sB, sC, sD = 62, 63, 64, 65
sKC, sCB = 66, 67
sXCC = 68
sL2E = 69
sSTAMP0 = 70


def gen(stamps=False, probe=None, win=8, win0=None, kalign=12, oalign=12, al8=True, flags=True, qdelay=19, qack=False, q2=0, cprobe=0, lite=False, ack=False, tlb=False, dbg=False, b0pos=-2, pre=0, qdual=True, na=4, qst='', qwarm=False, lst='', fearly=False, p1=4, n1=4, afirst=True, wpol='sc1', n2=4, wpre=3, wwait=False, tv=False, rho=True, wodiag=False, xfl=True, rdelay=0, fdelay=5, xpos=7, x2pos=12, gprobe=None, wlate=False, fsleep=30, ml8=False, mcomb=False, owait=False, hp8=False, fwarm=None, oearly=False, fbar=False, fmid=0, ssleep=0, rsleep=0, fp2=True, mret=True, coop=False, cpol='nt', wolate=False, odelay=0, fwdelay=0, wb1=False, wb2=False, owarm=None, wmask=0xffffffff,
        l2warm=False, spr=(3, 2, 0, 0), lpath=True):
    a = Asm()
    slow = []
    if win0 is None:
        win0 = win
    diag = stamps or probe is not None or gprobe is not None or lite

    inK = [False]

    def stamp(k):
        if stamps or (probe is not None and k in (0, probe)) or ((gprobe is not None or lite) and k == 0):
            a(f"s_memrealtime s[{sSTAMP0+2*k}:{sSTAMP0+2*k+1}]")
        if gprobe is not None and inK[0] and k == gprobe[0] and inK[0] in gprobe[1]:
            l = a.label("L_gp")
            a(f"""s_and_b32 s98, s{sS}, 7
            s_lshl2_add_u32 s98, s98, s{sW}
            s_cmp_lg_u32 s98, 0
            s_cbranch_scc1 {l}
            s_memrealtime s[96:97]
            s_load_dwordx2 s[94:95], s[0:1], 80
            s_waitcnt lgkmcnt(0)
            s_not_b32 s93, s{sSTAMP0}
            {'s_mov_b32 s96, s%d' % sSTAMP0 if gprobe[2] else ''}
            s_atomic_umax s96, s[94:95], 0
            s_atomic_umax s93, s[94:95], 64
            {l}:""")

    def flush_stamps():
        if not stamps:
            return
        a(f"""s_waitcnt lgkmcnt(0)
        s_mov_b64 exec, 1
        s_lshl_b32 s{sA}, s2, 3
        s_add_u32 s{sA}, s{sA}, s3
        s_lshl_b32 s{sA}, s{sA}, 6
        s_add_u32 s{sA}, s{sA}, {STAMPS}
        v_mov_b32 v1, 0""")
        for k in range(0, 16, 4):
            for j in range(4):
                a(f"v_mov_b32 v{4+j}, s{sSTAMP0+2*(k+j) if k + j < 15 else sCNT}")
            a(f"buffer_store_dwordx4 v[4:7], v1, s[{sWS}:{sWS+3}], s{sA} offen offset:{k*4}")
        a(f"""s_cmp_lg_u32 s3, 4
        s_cbranch_scc1 L_nq
        s_sub_u32 s{sA}, s{sA}, 256
        v_mov_b32 v2, {L_STQ}""")
        for k in range(4):
            a(f"ds_read_b128 v[4:7], v2 offset:{16*k}\ns_waitcnt lgkmcnt(0)\nbuffer_store_dwordx4 v[4:7], v1, s[{sWS}:{sWS+3}], s{sA} offen offset:{k*16}")
        a("L_nq:\ns_waitcnt vmcnt(0)")

    def epoch_to_tag():
        a(f"""s_and_b32 s{sT0}, s{sEP}, 0xff
        s_add_u32 s{sTAG}, s{sT0}, 1
        s_and_b32 s{sTAG}, s{sTAG}, 0xff""")
        for i in (1, 2, 3):
            a(f"""s_bfe_u32 s{sT1}, s{sEP}, {hex(0x80000 | (8*i))}
            s_add_u32 s{sT1}, s{sT1}, 1
            s_and_b32 s{sT1}, s{sT1}, 0xff
            s_cmp_eq_u32 s{sT1}, s{sT0}
            s_addc_u32 s{sT1}, s{sT1}, 0
            s_and_b32 s{sT1}, s{sT1}, 0xff
            s_lshl_b32 s{sT1}, s{sT1}, {8*i}
            s_or_b32 s{sTAG}, s{sTAG}, s{sT1}""")

    def round_bf16(dst, src):
        a(f"v_cvt_pk_bf16_f32 v{dst}, {src}, {src}")
        a(f"v_and_b32 v{dst}, s{sHI}, v{dst}")

    def dpp(op, d, s0, s1, ctl, rm="0xf", bm="0xf"):
        a(f"v_{op}_dpp v{d}, v{s0}{'' if s1 is None else ', v%d' % s1} {ctl} row_mask:{rm} bank_mask:{bm}")

    def wave_red(v, sdst, op="add", steps=(8, 4, 2, 1)):
        for k in steps:
            dpp(op + "_f32", v, v, v, f"row_ror:{k}")
        dpp(op + "_f32", v, v, v, "row_bcast:15", rm="0xa")
        dpp(op + "_f32", v, v, v, "row_bcast:31", rm="0xc")
        a(f"v_readlane_b32 s{sdst}, v{v}, 63")

    def poll_tail(lab, go):
        a(f"""s_cbranch_vccz {go}
        s_add_u32 s{sCNT}, s{sCNT}, 1
        s_cmp_lt_u32 s{sCNT}, {SPIN_LIMIT}
        s_cbranch_scc1 {lab}
        {go}:""")

    def xreduce4(r0):
        a(f"""v_permlane32_swap_b32 v{r0}, v{r0+1}
        v_permlane32_swap_b32 v{r0+2}, v{r0+3}
        v_add_f32 v{r0}, v{r0}, v{r0+1}
        v_add_f32 v{r0+2}, v{r0+2}, v{r0+3}
        v_permlane16_swap_b32 v{r0}, v{r0+2}
        v_add_f32 v{r0}, v{r0}, v{r0+2}""")

    def pub_store(data, voff, soff, n=4):
        ins = f"buffer_store_dwordx4 v[{data}:{data+3}]" if n == 4 else f"buffer_store_dword v{data}"
        ins += f", v{voff}, s[{sWS}:{sWS+3}], s{soff} offen"
        if not lpath:
            a(ins + " sc1")
            return
        l1 = a.label("L_wt"); l2 = a.label("L_wb")
        a(f"""s_cmp_eq_u32 s{sCOL}, 1
        s_cbranch_scc0 {l1}
        {ins} {lst}
        {l2}:""")
        slow.append(f"{l1}:\n{ins} sc1\ns_branch {l2}")

    def build_masks(vM):
        a(f"""v_and_b32 v7, 1, v2
        v_lshlrev_b32 v7, 4, v7
        v_mov_b32 v13, 0xffff
        v_lshlrev_b32 v13, v7, v13
        v_bfe_u32 v7, v2, 1, 2""")
        for i in range(4):
            a(f"v_cmp_eq_u32 vcc, {i}, v7")
            a(f"v_cndmask_b32 v{vM+i}, 0, v13, vcc")

    def flag_poll(name, voff, soff, tmp):
        if not flags:
            return
        a(f"""{name}:
        buffer_load_dword v{tmp}, v{voff}, s[{sWS}:{sWS+3}], s{soff} offen sc1
        s_waitcnt vmcnt(0)
        v_cmp_ne_u32 vcc, s{sTAG}, v{tmp}""")
        poll_tail(name, name + "_go")

    def sum4(r):
        a(f"""s_waitcnt lgkmcnt(2)
        v_pk_add_f32 v[{r}:{r+1}], v[{r}:{r+1}], v[{r+4}:{r+5}]
        v_pk_add_f32 v[{r+2}:{r+3}], v[{r+2}:{r+3}], v[{r+6}:{r+7}]
        s_waitcnt lgkmcnt(0)
        v_pk_add_f32 v[{r+8}:{r+9}], v[{r+8}:{r+9}], v[{r+12}:{r+13}]
        v_pk_add_f32 v[{r+10}:{r+11}], v[{r+10}:{r+11}], v[{r+14}:{r+15}]
        v_pk_add_f32 v[{r}:{r+1}], v[{r}:{r+1}], v[{r+8}:{r+9}]
        v_pk_add_f32 v[{r+2}:{r+3}], v[{r+2}:{r+3}], v[{r+10}:{r+11}]""")

    def tagcheck(acc, regs, tags, mask=True):
        a(f"v_xor_b32 v{acc}, v{regs[0]}, v{tags[0]}")
        for r, t in zip(regs[1:], tags[1:]):
            a(f"v_bitop3_b32 v{acc}, v{acc}, v{r}, v{t} bitop3:0xf6")
        a(f"""v_and_b32 v{acc}, s{sFF}, v{acc}
        v_cmp_ne_u32 vcc, 0, v{acc}""")

    vXS, vXL, vWo = 4, 5, 6
    X, XS, WQ = 16, 20, 64
    stamp(0)
    a(f"""s_load_dwordx2 s[{sX}:{sX+1}], s[0:1], 0
    s_load_dwordx2 s[{sWQ}:{sWQ+1}], s[0:1], 24
    s_load_dwordx4 s[{sK}:{sK+3}], s[0:1], 8
    s_load_dwordx2 s[{sWS}:{sWS+1}], s[0:1], 88
    v_readfirstlane_b32 s3, v0
    s_cmpk_ge_u32 s2, 256
    s_cbranch_scc1 L_end
    s_lshr_b32 s3, s3, 6
    s_cbranch_scc0 L_q
    s_cmp_lg_u32 s3, 4
    s_cbranch_scc1 L_kreg
    s_cmp_ge_u32 s2, 16
    s_cbranch_scc1 L_100
    s_getpc_b64 s[{sC}:{sD}]
    L_pc:
    v_lshlrev_b32 v7, 7, v0
    v_add_u32 v7, 0xffff8000, v7
    global_load_dword v140, v7, s[{sC}:{sD}]
    v_add_u32 v7, 0x2000, v7
    v_min_u32 v7, L_end-L_pc, v7
    global_load_dword v140, v7, s[{sC}:{sD}]
    s_branch L_100
    L_q:
    s_mov_b32 s{sX+3}, 0x20000
    s_movk_i32 s{sX+2}, 1024
    s_mov_b32 s{sWQ+3}, s{sX+3}
    s_lshl_b32 s{sWQ+2}, 1, 22
    s_bfe_u32 s{sKC}, s2, 0x20003
    s_lshr_b32 s{sCB}, s2, 5
    s_and_b32 s{sG}, s2, 7
    v_lshlrev_b32 v{vXS}, 4, v0
    v_lshrrev_b32 v{vXL}, 3, v0
    v_lshlrev_b32 v{vWo}, 17, v{vXL}
    v_and_b32 v7, 7, v0
    v_lshl_add_u32 v{vWo}, v7, 4, v{vWo}
    v_lshlrev_b32 v{vXL}, 5, v{vXL}
    s_lshl_b32 s{sA}, s{sKC}, 8
    s_lshl_b32 s{sB}, s{sKC}, 10
    s_add_u32 s{sB}, s{sB}, s{sG}
    s_lshl3_add_u32 s{sB}, s{sB}, s{sCB}
    s_lshl_b32 s{sB}, s{sB}, 7
    s_waitcnt lgkmcnt(0)
    buffer_load_dwordx4 v[{X}:{X+3}], v{vXS}, s[{sX}:{sX+3}], 0 offen
    buffer_load_dwordx4 v[{XS}:{XS+3}], v{vXL}, s[{sX}:{sX+3}], s{sA} offen
    buffer_load_dwordx4 v[{XS+4}:{XS+7}], v{vXL}, s[{sX}:{sX+3}], s{sA} offen offset:16""")
    nfirst = 0 if diag else 1
    for t in range(16):
        if t == nfirst:
            a(f"""s_branch L_q2
            .p2align 8
            L_100:
            s_branch L_kreg
            L_q2:
            s_setprio 3
            s_movk_i32 s{sD}, 0x2000""")
        if t > 0:
            a(f"s_add_u32 s{sB}, s{sB}, s{sD}")
        a(f"buffer_load_dwordx4 v[{WQ+4*t}:{WQ+4*t+3}], v{vWo}, s[{sWQ}:{sWQ+3}], s{sB} offen nt")
    if b0pos == 0: a("s_barrier")

    vM, vT3 = 8, 12
    U, vA, D, PP = 28, 36, 44, 48
    stamp(1)
    a(f"""s_load_dword s{sEP}, s[{sWS}:{sWS+1}], {EPOCH}
    s_mov_b32 s{sWS+3}, s{sX+3}
    s_lshl_b32 s{sWS+2}, 1, 28
    s_lshr_b32 s{sS}, s2, 3
    v_and_b32 v2, 15, v0
    v_lshrrev_b32 v3, 4, v0
    s_mov_b32 s{sFF}, 0xff
    s_mov_b32 s{sHI}, 0xffff0000
    s_mov_b32 s{sCNT}, 0
    s_mov_b32 s{sT3}, 0""")
    build_masks(vM)
    a(f"""s_getreg_b32 s{sXCC}, hwreg(HW_REG_XCC_ID)
    s_and_b32 s{sXCC}, s{sXCC}, 0xff
    v_and_b32 v7, 7, v0
    v_lshl_add_u32 v7, v3, 3, v7
    v_lshlrev_b32 v7, 4, v7
    s_lshl_b32 s{sA}, s{sG}, 13
    s_add_u32 s{sA}, s{sA}, {QP}
    s_lshl_b32 s{sB}, s{sKC}, 11
    s_add_u32 s{sB}, s{sB}, s{sA}
    s_lshl_b32 s{sC}, s{sCB}, 8
    s_add_u32 s{sB}, s{sB}, s{sC}
    s_add_u32 s{sC}, s{sA}, 4096
    v_mov_b32 v13, s{sXCC}""")
    if qdual and qwarm:
        a(f"""v_lshlrev_b32 v14, 7, v0
        s_mov_b64 exec, 3
        buffer_load_dword v15, v14, s[{sWS}:{sWS+3}], s{sB} offen sc1
        s_mov_b64 exec, -1""")
    nx = 1 if (qdual and qwarm) else 0
    a(f"s_waitcnt vmcnt({18+nx})")
    if b0pos == 1: a("s_barrier")
    stamp(2)
    for i in range(4):
        a(f"v_lshlrev_b32 v{U+2*i}, 16, v{X+i}")
        a(f"v_and_b32 v{U+2*i+1}, s{sHI}, v{X+i}")
    a(f"""v_pk_add_f32 v[{vA}:{vA+1}], v[{U}:{U+1}], v[{U+2}:{U+3}]
    v_pk_add_f32 v[{vA+2}:{vA+3}], v[{U+4}:{U+5}], v[{U+6}:{U+7}]
    v_pk_add_f32 v[{vA}:{vA+1}], v[{vA}:{vA+1}], v[{vA+2}:{vA+3}]
    v_add_f32 v{vA}, v{vA}, v{vA+1}""")
    wave_red(vA, sT0)
    if b0pos == -1: a("s_barrier")
    a(f"""v_mov_b32 v14, 0x3b000000
    v_mul_f32 v14, s{sT0}, v14""")
    for i in range(4):
        a(f"v_pk_add_f32 v[{U+2*i}:{U+2*i+1}], v[{U+2*i}:{U+2*i+1}], v[14:15] op_sel_hi:[1,0] neg_lo:[0,1] neg_hi:[0,1]")
    a(f"v_pk_mul_f32 v[{vA}:{vA+1}], v[{U}:{U+1}], v[{U}:{U+1}]")
    for i in range(1, 4):
        a(f"v_pk_fma_f32 v[{vA}:{vA+1}], v[{U+2*i}:{U+2*i+1}], v[{U+2*i}:{U+2*i+1}], v[{vA}:{vA+1}]")
    a(f"v_add_f32 v{vA}, v{vA}, v{vA+1}")
    wave_red(vA, sT0)
    if b0pos == -2: a("s_barrier")
    round_bf16(14, "v14")
    a(f"""v_mov_b32 v40, 0x3b000000
    v_mul_f32 v40, s{sT0}, v40""")
    round_bf16(40, "v40")
    a(f"v_add_f32 v40, {hex(EPS)}, v40")
    round_bf16(40, "v40")
    a(f"v_sqrt_f32 v40, v40")
    round_bf16(40, "v40")
    a(f"v_rcp_f32 v40, v40")
    a(f"s_waitcnt vmcnt({16+nx})")
    for j in range(8):
        u = U + 2 * (j % 4)
        a(f"""v_lshlrev_b32 v{u}, 16, v{XS+j}
        v_and_b32 v{u+1}, s{sHI}, v{XS+j}
        v_pk_add_f32 v[{u}:{u+1}], v[{u}:{u+1}], v[14:15] op_sel_hi:[1,0] neg_lo:[0,1] neg_hi:[0,1]
        v_cvt_pk_bf16_f32 v{u+1}, v{u}, v{u+1}
        v_lshlrev_b32 v{u}, 16, v{u+1}
        v_and_b32 v{u+1}, s{sHI}, v{u+1}
        v_pk_mul_f32 v[{u}:{u+1}], v[{u}:{u+1}], v[40:41] op_sel_hi:[1,0]
        v_cvt_pk_bf16_f32 v{PP+2*j}, v{u}, v{u}
        v_cvt_pk_bf16_f32 v{PP+2*j+1}, v{u+1}, v{u+1}""")
    if b0pos == 2: a("s_barrier")
    stamp(3)
    a(f"s_waitcnt lgkmcnt(0)")
    epoch_to_tag()
    a(f"""v_lshlrev_b32 v14, 3, v0
    v_add_u32 v14, 24, v14
    v_alignbit_b32 v{vT3}, s{sTAG}, s{sTAG}, v14""")
    stamp(8)

    def selA(t):
        s = vA + 4 * (t & 1)
        for i in range(4):
            a(f"v_and_b32 v{s+i}, v{PP+t}, v{vM+i}")
    selA(0)
    for t in range(16):
        if t < 15:
            selA(t + 1)
        a(f"s_waitcnt vmcnt({15-t+nx})")
        if b0pos == 3 + t: a("s_barrier")
        s = vA + 4 * (t & 1)
        c = "0" if t == 0 else f"v[{D}:{D+3}]"
        a(f"v_mfma_f32_16x16x32_bf16 v[{D}:{D+3}], v[{s}:{s+3}], v[{WQ+4*t}:{WQ+4*t+3}], {c}")
    for i in range(4):
        a(f"v_mov_b32 v{U+i}, v{D+i}")
    for i in range(4):
        a(f"v_permlane32_swap_b32 v{D+i}, v{U+i}")
    for i in range(4):
        dpp("add_f32", D + i, U + i, D + i, "row_ror:8")
    a(f"""v_bfi_b32 v{D+2}, s{sFF}, v13, v{D+2}
    v_bfi_b32 v{D+3}, s{sFF}, v{vT3}, v{D+3}
    s_mov_b64 exec, 0x00ff00ff
    """)
    if qdual:
        a(f"""buffer_store_dwordx4 v[{D}:{D+3}], v7, s[{sWS}:{sWS+3}], s{sB} offen {qst}
        s_add_u32 s{sB}, s{sB}, {QB - QP}""")
    a(f"""buffer_store_dwordx4 v[{D}:{D+3}], v7, s[{sWS}:{sWS+3}], s{sB} offen sc1
    s_mov_b64 exec, -1""")
    if p1: a("s_barrier")
    stamp(4)
    a(f"""v_and_b32 v14, 8, v0
    v_add_u32 v7, v7, v14""")
    if l2warm:
        a(f"""s_lshl_b32 s{sT0}, s{sG}, 16
        s_lshl_b32 s{sT1}, s{sS}, 11
        s_add_u32 s{sT0}, s{sT0}, s{sT1}
        s_add_u32 s{sT0}, s{sT0}, {OP}
        v_lshlrev_b32 v15, 7, v0
        v_add_u32 v14, s{sT0}, v15
        s_lshr_b32 s{sT0}, s{sS}, 3
        s_lshl3_add_u32 s{sT0}, s{sT0}, s{sG}
        s_min_u32 s{sT0}, s{sT0}, 27
        s_and_b32 s{sT2}, s{sS}, 7
        s_lshl3_add_u32 s{sT1}, s{sT0}, s{sT2}
        s_lshl_b32 s{sT1}, s{sT1}, 11
        s_add_u32 s{sT1}, s{sT1}, {GP - 16*128}
        v_add_u32 v15, s{sT1}, v15
        v_cmp_lt_u32 vcc, 15, v0
        v_cndmask_b32 v14, v14, v15, vcc
        s_and_b32 s{sT1}, s{sS}, 15
        s_lshl4_add_u32 s{sT1}, s{sG}, s{sT1}
        s_lshl_b32 s{sT1}, s{sT1}, 7
        s_add_u32 s{sT1}, s{sT1}, {ML}
        v_writelane_b32 v14, s{sT1}, 32
        s_and_b32 s{sT2}, s{sS}, 1
        s_lshl1_add_u32 s{sT1}, s{sT0}, s{sT2}
        s_lshl_b32 s{sT1}, s{sT1}, 7
        s_add_u32 s{sT1}, s{sT1}, {ST}
        v_writelane_b32 v14, s{sT1}, 33
        s_lshl1_add_u32 s{sT1}, s{sG}, s{sT2}
        s_lshl_b32 s{sT1}, s{sT1}, 7
        s_add_u32 s{sT1}, s{sT1}, {FL2}
        v_writelane_b32 v14, s{sT1}, 34""")
    def warmload():
        if l2warm:
            a(f"""s_mov_b32 exec_hi, 7
            s_mov_b32 exec_lo, {hex(wmask)}
            buffer_load_dword v17, v14, s[{sWS}:{sWS+3}], 0 offen {wpol}
            s_mov_b64 exec, -1""")
    if not wlate:
        warmload()
    if ack:
        a("s_waitcnt vmcnt(0)")
    if qack:
        a("s_waitcnt vmcnt(1)")
        stamp(8)
    if qdelay:
        a(f"s_sleep {qdelay}")
    if qdual and not afirst:
        a(f"""s_add_u32 s{sA}, s{sA}, {QB - QP}
        s_add_u32 s{sC}, s{sC}, {QB - QP}""")
    stamp(7)
    G = WQ

    def qloads(G=G):
        for kc in range(4):
            for h in range(2):
                o = kc * 2048 + h * 1024
                r = G + 4 * (kc * 2 + h)
                a(f"buffer_load_dwordx4 v[{r}:{r+3}], v{vXS}, s[{sWS}:{sWS+3}], s{sA if o < 4096 else sC} offen offset:{o % 4096} sc1")
    if n2:
        qloads()
        a("s_barrier")
        if wlate:
            a("v_mov_b32 v16, v14")
            warmload()
            a("s_waitcnt vmcnt(1)\ns_branch L_qchk2")
        elif q2:
            a(f"s_sleep {q2}")
            qloads(96)
            a("s_waitcnt vmcnt(8)")
            tagcheck(14, [G + 4 * k + 3 for k in range(8)], [vT3] * 8)
            a(f"s_cbranch_vccz L_qgo\ns_mov_b32 s{sT3}, 1\ns_waitcnt vmcnt(0)")
            for k in range(32):
                a(f"v_mov_b32 v{G+k}, v{96+k}")
            a("s_branch L_qchk2")
        else:
            a("s_branch L_qchk")
    a("L_qpoll:")
    qloads()
    a("L_qchk:\ns_waitcnt vmcnt(0)\nL_qchk2:")
    tagcheck(14, [G + 4 * k + 3 for k in range(8)], [vT3] * 8)
    if qdual:
        a(f"""s_cbranch_vccz L_qgo
        s_add_u32 s{sCNT}, s{sCNT}, 1
        s_cmp_eq_u32 s{sCNT}, 1
        s_cselect_b32 s{sT0}, {0 if afirst else QP - QB}, 0
        s_cmp_eq_u32 s{sCNT}, {na + 1}
        s_cselect_b32 s{sT0}, {QB - QP}, s{sT0}
        s_add_u32 s{sA}, s{sA}, s{sT0}
        s_add_u32 s{sC}, s{sC}, s{sT0}
        s_cmp_lt_u32 s{sCNT}, {SPIN_LIMIT}
        s_cbranch_scc1 L_qpoll
        L_qgo:""")
    else:
        poll_tail("L_qpoll", "L_qgo")
    stamp(5)
    if cprobe:
        a(f"""s_load_dwordx2 s[94:95], s[0:1], 80
        s_min_u32 s96, s{sCNT if cprobe == 2 or not q2 else sT3}, 1
        s_waitcnt lgkmcnt(0)
        s_atomic_add s96, s[94:95], 128""")
    for h in range(2):
        r = G + 4 * h
        a(f"v_xor_b32 v15, v{r+2}, v13" if h == 0 else f"v_bitop3_b32 v15, v15, v{r+2}, v13 bitop3:0xf6")
        for kc in range(1, 4):
            q = G + 4 * (kc * 2 + h)
            a(f"v_bitop3_b32 v15, v15, v{q+2}, v13 bitop3:0xf6")
            a(f"v_pk_add_f32 v[{r}:{r+1}], v[{r}:{r+1}], v[{q}:{q+1}]")
            a(f"v_pk_add_f32 v[{r+2}:{r+3}], v[{r+2}:{r+3}], v[{q+2}:{q+3}]")
        a(f"v_cvt_pk_bf16_f32 v{r}, v{r}, v{r+1}")
        a(f"v_cvt_pk_bf16_f32 v{r+1}, v{r+2}, v{r+3}")
        a(f"ds_write_b64 v7, v[{r}:{r+1}] offset:{L_Q + 512*h}")
    a(f"""v_and_b32 v15, s{sFF}, v15
    v_cmp_ne_u32 vcc, 0, v15
    s_cmp_eq_u64 vcc, 0
    s_cselect_b32 s{sA}, 1, 0
    v_mov_b32 v14, s{sA}
    v_mov_b32 v15, {L_FLAG}
    ds_write_b32 v15, v14""")
    if stamps:
        stamp(6)
        a(f"s_waitcnt lgkmcnt(0)\nv_mov_b32 v15, {L_STQ}")
        for k in (0, 1, 3, 4, 5, 7, 8, 15):
            a(f"v_mov_b32 v14, s{sSTAMP0+2*k if k < 15 else sCNT}\nds_write_b32 v15, v14 offset:{4*k}")
    a(f"""s_waitcnt lgkmcnt(0)
    s_barrier
    s_endpgm""")

    inK[0] = 'K'
    vKo, vVo = 4, 5
    KD, VD, WD = 32, 64, 96
    W2D = WD + 32
    vM, vPM, vT, vWo, vI = 8, 12, 24, 14, 15
    vQa, vOa, vMa, vMr = 16, 17, 18, 23
    vWA = 142
    a(f""".p2align {kalign}
    L_kreg:
    s_load_dwordx2 s[{pWO}:{pWO+1}], s[0:1], 32
    s_load_dwordx4 s[{pW1}:{pW1+3}], s[0:1], 48
    s_load_dwordx4 s[{pW2}:{pW2+3}], s[0:1], 64
    v_and_b32 v0, 63, v0
    s_and_b32 s{sG}, s2, 7
    s_lshr_b32 s{sS}, s2, 3
    s_sub_u32 s{sW}, s3, 1
    v_and_b32 v2, 15, v0
    v_lshrrev_b32 v3, 4, v0
    v_and_b32 v6, 7, v2
    v_lshlrev_b32 v{vKo}, 8, v6
    v_lshrrev_b32 v6, 3, v2
    v_lshl_add_u32 v{vKo}, v6, 6, v{vKo}
    v_lshl_add_u32 v{vKo}, v3, 4, v{vKo}
    v_lshlrev_b32 v{vVo}, 10, v3
    v_lshl_add_u32 v{vVo}, v2, 4, v{vVo}
    s_lshl_b32 s{sA}, s{sG}, 23
    s_lshl_b32 s{sB}, s{sS}, 12
    s_add_u32 s{sA}, s{sA}, s{sB}
    s_lshl_b32 s{sB}, s{sW}, 17
    s_add_u32 s{sA}, s{sA}, s{sB}
    s_add_u32 s{sA}, s{sA}, {28672*256}
    s_add_u32 s{sB}, s{sA}, 0x80000
    s_mov_b32 s{sV+3}, 0x20000
    s_lshl_b32 s{sV+2}, 1, 26
    s_waitcnt lgkmcnt(0)
    s_load_dword s{sEP}, s[{sWS}:{sWS+1}], {EPOCH}
    s_mov_b32 s{sV}, s{sK+2}
    s_mov_b32 s{sV+1}, s{sK+3}
    s_mov_b32 s{sK+2}, s{sV+2}
    s_mov_b32 s{sK+3}, s{sV+3}
    s_mov_b32 s{sWS+3}, s{sV+3}
    s_lshl_b32 s{sWS+2}, 1, 28""")
    if tlb:
        a(f"""s_load_dword s{sT0}, s[{sV}:{sV+1}], s{sA}
        s_lshl_b32 s{sC}, s{sG}, 19
        s_load_dword s{sT0}, s[{pWO}:{pWO+1}], s{sC}
        s_load_dword s{sT0}, s[{pW1}:{pW1+1}], 0
        s_load_dword s{sT0}, s[{pW3}:{pW3+1}], 0
        s_load_dword s{sT0}, s[{pW2}:{pW2+1}], 0
        s_load_dword s{sT0}, s[{pW2+2}:{pW2+3}], 0""")

    def kvload(n):
        if n < 8:
            tau, eta, lam = n >> 2, (n >> 1) & 1, n & 1
            r = KD + n * 4
            a(f"buffer_load_dwordx4 v[{r}:{r+3}], v{vKo}, s[{sK}:{sK+3}], s{sA+tau} offen offset:{eta*2048+lam*128} nt")
        else:
            k = n - 8
            tau, i = divmod(k, 4)
            r = VD + k * 4
            a(f"buffer_load_dwordx4 v[{r}:{r+3}], v{vVo}, s[{sV}:{sV+3}], s{sA+tau} offen offset:{i*256} nt")
    if b0pos == 0:
        for n in range(win0):
            if n == pre: a("s_barrier")
            kvload(n)
        if not dbg: stamp(1)
    else:
        for n in range(pre):
            kvload(n)
    a(f"""s_mov_b32 s{sX+3}, s{sV+3}
    s_movk_i32 s{sX+2}, 1024
    s_mov_b32 s{sOUT}, s{pW2+2}
    s_mov_b32 s{sOUT+1}, s{pW2+3}
    s_movk_i32 s{sOUT+2}, 1024
    s_mov_b32 s{sOUT+3}, s{sV+3}
    s_mov_b32 s{sFF}, 0xff
    s_mov_b32 s{sHI}, 0xffff0000
    s_mov_b32 s{sCNT}, 0
    s_mov_b32 s{sL2E}, {hex(LOG2E)}""")
    build_masks(vM)
    a(f"""v_or_b32 v{vPM}, v{vM}, v{vM+2}
    v_or_b32 v{vPM+1}, v{vM+1}, v{vM+3}
    v_cmp_gt_u32 vcc, 8, v2""")
    for i in range(4):
        a(f"v_cndmask_b32 v{vM+i}, 0, v{vM+i}, vcc")
    a(f"""v_and_b32 v{vI}, 1, v3
    v_lshlrev_b32 v{vI}, 1, v{vI}
    v_lshrrev_b32 v6, 1, v3
    v_add_u32 v{vI}, v{vI}, v6
    s_and_b32 s{sKC}, s{sS}, 3
    s_lshr_b32 s{sC}, s{sS}, 2
    s_lshl2_add_u32 s{sT3}, s{sG}, s{sC}   ; H (O role)
    s_sub_u32 s{sCB}, s{sC}, 4
    s_lshl_b32 s{sCB}, s{sCB}, 3
    s_add_u32 s{sCB}, s{sCB}, s{sG}
    s_cmp_lt_u32 s{sS}, 16
    s_cselect_b32 s{sROLE}, 0, 1
    s_cselect_b32 s{sCB}, 0, s{sCB}
    s_cmp_ge_u32 s{sCB}, 28
    s_cselect_b32 s{sROLE}, 2, s{sROLE}
    s_lshl2_add_u32 s{sT2}, s{sCB}, s{sKC} ; f (F role)
    v_lshrrev_b32 v6, 2, v2
    v_lshlrev_b32 v{vQa}, 8, v6
    v_and_b32 v7, 2, v2
    v_lshl_add_u32 v{vQa}, v7, 5, v{vQa}
    v_lshl_add_u32 v{vQa}, v3, 4, v{vQa}
    v_lshlrev_b32 v{vOa}, 9, v3
    v_lshl_add_u32 v{vOa}, v2, 5, v{vOa}
    s_lshl_b32 s{sC}, s{sW}, 11
    s_add_u32 s{sC}, s{sC}, {L_OW}
    v_add_u32 v{vOa}, s{sC}, v{vOa}
    v_lshlrev_b32 v{vMr}, 4, v6
    v_add_u32 v{vMr}, {L_ML}, v{vMr}
    s_lshl_b32 s{sC}, s{sW}, 2
    v_add_u32 v{vMa}, s{sC}, v{vMr}
    v_lshlrev_b32 v6, 2, v0
    v_add_u32 v6, {L_DUMMY}, v6
    v_and_b32 v7, 0x33, v0
    v_cmp_eq_u32 vcc, 0, v7
    v_cndmask_b32 v{vMa}, v6, v{vMa}, vcc
    v_lshlrev_b32 v{vWo}, 10, v{vI}
    v_lshl_add_u32 v{vWo}, v2, 4, v{vWo}  ; i(g4)*1024 + c*16
    v_lshlrev_b32 v19, 4, v0""")
    if p1:
        a("s_barrier")
        for n in range(n1):
            if n >= p1:
                a(f"s_waitcnt vmcnt({p1 - 1})")
            kvload(n)
        a("s_barrier")
        if n2:
            for n in range(n1, n1 + n2):
                kvload(n)
            a("s_barrier")
        if not dbg: stamp(1)
        for n in range(n1 + n2, 16):
            if n >= win:
                a(f"s_waitcnt vmcnt({win - 1})")
            kvload(n)
    else:
        if b0pos != 0:
            a("s_barrier")
            for n in range(pre, win0):
                kvload(n)
            if not dbg: stamp(1)
        for n in range(win0, 16):
            a(f"s_waitcnt vmcnt({min(win, n) - 1})")
            kvload(n)
    a("s_waitcnt lgkmcnt(0)")
    epoch_to_tag()
    a(f"v_lshlrev_b32 v6, 3, v0")
    for j in range(4):
        a(f"v_alignbit_b32 v{vT+j}, s{sTAG}, s{sTAG}, v6")
        if j < 3:
            a(f"v_add_u32 v6, 8, v6")
    a(f"""s_lshl1_add_u32 s{sRHO}, s{sW}, s{sS}
    s_and_b32 s{sRHO}, s{sRHO}, {7 if rho else 0}
    s_bfe_u32 s{sWOF}, s{sS}, 0x20002
    s_lshl2_add_u32 s{sWOF}, s{sG}, s{sWOF}
    s_lshl2_add_u32 s{sWOF}, s{sWOF}, s{sW}
    s_lshl3_add_u32 s{sWOF}, s{sWOF}, s{sRHO}
    s_lshl4_add_u32 s{sWOF}, s{sWOF}, s{sKC}
    s_lshl_b32 s{sWOF}, s{sWOF}, 8
    s_cmp_eq_u32 s{sROLE}, 0
    s_cselect_b32 s{pWO+2}, 0x400000, {'0x400000' if coop else '0'}
    s_cselect_b32 s{sC}, 0, {'0x4000' if coop else '0'}
    s_xor_b32 s{sWOF}, s{sWOF}, s{sC}
    s_mov_b32 s{pWO+3}, 0x20000
    s_mov_b32 s{sSTR+1}, 0""")
    WAF = f"""s_lshl_b32 s{sD}, s{sKC}, 7
    s_lshl_b32 s{sC}, s{sW}, 5
    s_add_u32 s{sD}, s{sD}, s{sC}
    s_mul_i32 s{sD}, s{sD}, 3584
    s_lshl_b32 s{sC}, s{sCB}, 7
    s_add_u32 s{sD}, s{sD}, s{sC}
    s_movk_i32 s{sC}, 3584
    v_mul_u32_u24 v6, s{sC}, v{vI}
    v_and_b32 v20, 7, v0
    v_lshl_add_u32 v6, v20, 4, v6
    v_add_u32 v6, s{sD}, v6
    v_lshl_add_u64 v[{vWA}:{vWA+1}], v[6:7], 0, s[{pW1}:{pW1+1}]
    v_lshl_add_u64 v[20:21], v[6:7], 0, s[{pW3}:{pW3+1}]
    v_cmp_gt_u32 vcc, 8, v2
    v_cndmask_b32 v{vWA}, v20, v{vWA}, vcc
    v_cndmask_b32 v{vWA+1}, v21, v{vWA+1}, vcc
    s_movk_i32 s{sSTR}, {4*3584}
"""
    a(f"""L_wad:
    s_lshl2_add_u32 s{sC}, s{sG}, s{sW}
    s_lshl_b32 s{sC}, s{sC}, 5
    s_add_u32 s{sC}, s{sC}, s{sS}
    s_lshl_b32 s{sA}, s{sC}, 9
    s_add_u32 s{sA}, s{sA}, {OP}
    s_lshl_b32 s{sB}, s{sC}, {7 if ml8 else 4}
    s_add_u32 s{sB}, s{sB}, {ML8 if ml8 else ML}
    s_lshl_b32 s{sC}, s{sW}, 4
    s_add_u32 s{sC}, s{sC}, {L_ML}
    v_mov_b32 v22, s{sC}
    s_lshl_b32 s{sC}, s{sW}, 9
    s_add_u32 s{sC}, s{sC}, {L_OW}
    v_lshl_add_u32 v1, v0, 4, s{sC}
    v_mov_b32 v6, {L_FLAG}
    v_mov_b32 v20, {hex(SCALE)}""")
    vMo_, vGo_, vTo_ = 136, 137, 138
    a(f"""v_lshrrev_b32 v6, 3, v0
    v_and_b32 v7, 3, v0
    v_lshl_add_u32 v{vMo_}, v6, 2, v7
    v_lshlrev_b32 v{vMo_}, {7 if ml8 else 4}, v{vMo_}
    v_and_b32 v7, 7, v0
    v_xor_b32 v7, s{sRHO}, v7
    v_lshlrev_b32 v{vGo_}, 11, v6
    v_lshl_add_u32 v{vGo_}, v7, 4, v{vGo_}
    v_lshlrev_b32 v7, 3, v7
    v_add_u32 v7, 24, v7
    v_alignbit_b32 v{vTo_}, s{sTAG}, s{sTAG}, v7""")
    a(f"v_mov_b32 v6, {L_FLAG}")
    wn = [0]

    def woloads(k, pol="nt"):
        for _ in range(k):
            t = wn[0]
            a(f"buffer_load_dwordx4 v[{WD+4*t}:{WD+4*t+3}], v{vWo}, s[{pWO}:{pWO+3}], s{sWOF} offen {pol}")
            if t < 7:
                a(f"s_xor_b32 s{sWOF}, s{sWOF}, {hex((t ^ (t + 1)) << 12)}")
            wn[0] += 1

    def wloads(k):
        for _ in range(k):
            t = wn[0]
            a(f"global_load_dwordx4 v[{WD+4*t}:{WD+4*t+3}], v[{vWA}:{vWA+1}], off nt")
            if t < 7:
                a(f"v_lshl_add_u64 v[{vWA}:{vWA+1}], s[{sSTR}:{sSTR+1}], 0, v[{vWA}:{vWA+1}]")
            wn[0] += 1
    def rloads(k):
        if k == 0:
            return
        if coop and cpol != 'nt':
            n0 = wn[0]
            l1 = a.label("L_rf"); l2 = a.label("L_rd")
            a(f"s_cmp_lg_u32 s{sROLE}, 0\ns_cbranch_scc1 {l1}")
            woloads(k)
            a(f"s_branch {l2}\n{l1}:")
            wn[0] = n0
            woloads(k, cpol)
            a(f"{l2}:")
            return
        if not fearly:
            woloads(k)
            return
        n0 = wn[0]
        l1 = a.label("L_rf"); l2 = a.label("L_rd")
        a(f"s_cmp_eq_u32 s{sROLE}, 1\ns_cbranch_scc1 {l1}")
        woloads(k)
        a(f"s_branch {l2}\n{l1}:")
        wn[0] = n0
        wloads(k)
        a(f"{l2}:")
    if fwarm is not None:
        a(f"""s_and_b32 s{sC}, s{sS}, 15
        s_lshl4_add_u32 s{sC}, s{sG}, s{sC}
        s_lshl_b32 s{sD}, s{sC}, 12
        s_add_u32 s{sD}, s{sD}, {OP}
        s_lshl_b32 s{sT0}, s{sW}, 7
        s_add_u32 s{sD}, s{sD}, s{sT0}
        v_and_b32 v140, 7, v0
        v_lshlrev_b32 v140, 9, v140
        v_add_u32 v140, s{sD}, v140
        s_lshl_b32 s{sC}, s{sC}, 7
        s_add_u32 s{sC}, s{sC}, {ML}
        v_writelane_b32 v140, s{sC}, 8""")
    nwm = 0
    if owarm is not None:
        nwm = 1
        a(f"""s_lshl2_add_u32 s{sC}, s{sT3}, s{sKC}
        s_lshl_b32 s{sD}, s{sC}, 12
        s_add_u32 s{sD}, s{sD}, {OP}
        s_lshl_b32 s{sT0}, s{sW}, 7
        s_add_u32 s{sD}, s{sD}, s{sT0}
        v_lshlrev_b32 v7, 9, v0
        v_add_u32 v7, s{sD}, v7
        s_lshl_b32 s{sC}, s{sC}, 7
        s_add_u32 s{sC}, s{sC}, {ML}
        v_writelane_b32 v7, s{sC}, 8
        s_cmp_eq_u32 s{sROLE}, 0
        s_cselect_b32 s{sC}, 0, 0x10000000
        s_mov_b64 exec, 0x1ff
        buffer_load_dword v139, v7, s[{sWS}:{sWS+3}], s{sC} offen {owarm}
        s_mov_b64 exec, -1""")
    if True:
        a(f"v_mov_b32 v{vWA}, 0\nv_mov_b32 v{vWA+1}, 0\ns_cmp_lg_u32 s{sROLE}, 1\ns_cbranch_scc1 L_nwaf\nv_mov_b32 v7, 0")
        a(WAF)
        a(f"v_mov_b32 v6, {L_FLAG}\nv_mov_b32 v20, {hex(SCALE)}\nL_nwaf:")
    if wwait:
        for _ in range(wpre):
            a(f"s_waitcnt vmcnt({win - 1})")
            rloads(1)
    else:
        rloads(wpre)
    if tv: a("s_waitcnt vmcnt(0)")
    if not dbg: stamp(2)
    a("s_barrier")
    stamp(3)
    B0, SD = 144, 152
    a(f"""ds_read_b128 v[{B0}:{B0+3}], v{vQa} offset:{L_Q}
    ds_read_b128 v[{B0+4}:{B0+7}], v{vQa} offset:{L_Q+128}
    ds_read_b32 v6, v6
    s_waitcnt vmcnt({8 + wpre + nwm})""")
    rloads(spr[0])
    a("s_waitcnt lgkmcnt(0)")
    for lam in range(2):
        for te in range(4):
            r = KD + (te * 2 + lam) * 4
            d = SD + te * 4
            c = "0" if lam == 0 else f"v[{d}:{d+3}]"
            a(f"v_mfma_f32_16x16x32_bf16 v[{d}:{d+3}], v[{r}:{r+3}], v[{B0+4*lam}:{B0+4*lam+3}], {c}")
    rloads(spr[1])
    a(f"v_readfirstlane_b32 s{sCOL}, v6")
    for tau in range(2):
        for i in range(4):
            a(f"v_permlane32_swap_b32 v{SD+8*tau+i}, v{SD+8*tau+4+i}")
    Sx = [SD + 8 * tau + i for tau in range(2) for i in range(4)]
    for s in Sx:
        dpp("add_f32", s, s + 4, s, "quad_perm:[2,3,2,3]")
    P2 = [Sx[0], Sx[2], Sx[4], Sx[6]]
    for s in P2: a(f"v_cvt_pk_bf16_f32 v{s+1}, v{s}, v{s+1}")
    for s in P2: a(f"v_lshlrev_b32 v{s}, 16, v{s+1}\nv_and_b32 v{s+1}, s{sHI}, v{s+1}")
    for s in P2: a(f"v_pk_mul_f32 v[{s}:{s+1}], v[{s}:{s+1}], v[20:21] op_sel_hi:[1,0]")
    for s in P2: a(f"v_cvt_pk_bf16_f32 v{s+1}, v{s}, v{s+1}")
    for s in P2: a(f"v_lshlrev_b32 v{s}, 16, v{s+1}\nv_and_b32 v{s+1}, s{sHI}, v{s+1}")
    a(f"""v_max3_f32 v28, v{Sx[0]}, v{Sx[1]}, v{Sx[2]}
    v_max3_f32 v29, v{Sx[3]}, v{Sx[4]}, v{Sx[5]}
    v_max3_f32 v28, v{Sx[6]}, v{Sx[7]}, v28
    v_max_f32 v28, v28, v29
    v_mov_b32 v29, v28
    v_permlane32_swap_b32 v28, v29
    v_max_f32 v28, v28, v29
    v_mov_b32 v29, v28
    v_permlane16_swap_b32 v28, v29
    v_max_f32 v28, v28, v29
    ds_write_b32 v{vMa}, v28""")
    a(f"""s_waitcnt lgkmcnt(0)
    s_barrier
    ds_read_b128 v[28:31], v{vMr}""")
    rloads(spr[2])
    a("s_waitcnt lgkmcnt(0)")
    if dbg: stamp(1)
    a(f"""    v_max3_f32 v28, v28, v29, v30
    v_max_f32 v28, v28, v31
    v_mul_f32 v20, s{sL2E}, v28""")
    for k in range(8):
        a(f"v_fma_f32 v{Sx[k]}, v{Sx[k]}, s{sL2E}, -v20")
    for k in range(8):
        a(f"v_exp_f32 v{Sx[k]}, v{Sx[k]}")
    a(f"""v_pk_add_f32 v[20:21], v[{Sx[0]}:{Sx[1]}], v[{Sx[2]}:{Sx[3]}]
    v_pk_add_f32 v[28:29], v[{Sx[4]}:{Sx[5]}], v[{Sx[6]}:{Sx[7]}]
    v_pk_add_f32 v[20:21], v[20:21], v[28:29]
    v_add_f32 v20, v20, v21
    v_mov_b32 v21, v20
    v_permlane32_swap_b32 v20, v21
    v_add_f32 v20, v20, v21
    v_mov_b32 v21, v20
    v_permlane16_swap_b32 v20, v21
    v_add_f32 v20, v20, v21
    ds_write_b32 v{vMa}, v20 offset:64""")
    XR = [SD + 4, SD + 6, SD + 12, SD + 14, B0, B0 + 2, B0 + 4, B0 + 6]
    for k in range(8):
        a(f"v_cvt_pk_bf16_f32 v{XR[k]+1}, v{Sx[k]}, v{Sx[k]}")
    for k in range(8):
        dpp("and_b32", XR[k], XR[k] + 1, vPM, "quad_perm:[0,0,0,0]")
    for k in range(8):
        dpp("and_b32", XR[k] + 1, XR[k] + 1, vPM + 1, "quad_perm:[0,0,0,0]")
    a(f"""v_mov_b32 v30, s{sTAG}
    v_mov_b32 v31, s{sTAG}""")
    if dbg: stamp(2)
    a(f"""s_waitcnt lgkmcnt(0)
    s_barrier""")
    if dbg: stamp(13)
    a(f"""ds_read_b128 v[40:43], v22
    ds_read_b128 v[44:47], v22 offset:64""")
    rloads(spr[3])
    assert wn[0] == (0 if wolate else 4 if coop else 8)
    nw_ = wn[0]
    a(f"""s_mov_b64 exec, {'0xff' if ml8 else 1}
    s_waitcnt lgkmcnt(0)
    v_max3_f32 v28, v40, v41, v42
    v_max_f32 v28, v28, v43
    v_pk_add_f32 v[44:45], v[44:45], v[46:47]
    v_add_f32 v29, v44, v45""")
    if dbg: stamp(14)
    pub_store(28, 19, sB)
    a("s_mov_b64 exec, -1")
    stamp(4)
    OA = KD
    for k in range(8):
        a(f"s_waitcnt vmcnt({7 - k + 1 + nw_ + nwm})")
        r = VD + k * 4
        for u in range(2):
            d = OA + 4 * u
            c = "0" if k == 0 else f"v[{d}:{d+3}]"
            a(f"v_mfma_f32_16x16x16_bf16 v[{d}:{d+3}], v[{XR[k]}:{XR[k]+1}], v[{r+2*u}:{r+2*u+1}], {c}")
    if fmid:
        a(f"s_cmp_lg_u32 s{sROLE}, 1\ns_cbranch_scc1 L_nfm")
        n0 = wn[0]; wn[0] = 0
        wloads(fmid)
        wn[0] = n0
        a("L_nfm:")
    stamp(5)
    if wodiag:
        a("s_waitcnt vmcnt(1)")
        stamp(14)
    a(f"""ds_write_b128 v{vOa}, v[{OA}:{OA+3}]
    ds_write_b128 v{vOa}, v[{OA+4}:{OA+7}] offset:16
    s_waitcnt lgkmcnt(0)
    s_barrier
    s_mov_b32 exec_hi, 0""")
    for w in range(4):
        a(f"ds_read_b128 v[{48+4*w}:{48+4*w+3}], v1 offset:{2048*w}")
    sum4(48)
    a(f"v_bfi_b32 v51, s{sFF}, v{vT+3}, v51")
    pub_store(48, 19, sA)
    a("s_mov_b32 exec_hi, -1")
    stamp(6)
    a(f"s_cmp_eq_u32 s{sROLE}, 0\ns_cbranch_scc1 L_orole")
    GD, GE = 32, 64
    vGo, vMo = vGo_, vMo_
    AS, DD, RR = 84, 92, 80

    def gemv(src, n, wbase, bank, dreg, bc=lambda t: t, after=None):
        def sel(t):
            s = AS + 4 * (t & 1)
            for i in range(4):
                dpp("and_b32", s + i, src, vM + i, f"row_newbcast:{bc(t)}", bm=bank)
        sel(0)
        for t in range(n):
            if t < n - 1:
                sel(t + 1)
            s = AS + 4 * (t & 1)
            c = "0" if t == 0 else f"v[{dreg}:{dreg+3}]"
            a(f"v_mfma_f32_16x16x32_bf16 v[{dreg}:{dreg+3}], v[{s}:{s+3}], v[{wbase+4*t}:{wbase+4*t+3}], {c}")

    def masked_poll(name, loads, acc, regs, tags, quad=True, pre=None):
        a(f"{name}:\ns_waitcnt vmcnt(0)")
        tagcheck(acc, regs, tags)
        a(f"s_cbranch_vccz {name}_go")
        if quad:
            dpp("or_b32", acc, acc, acc, "quad_perm:[1,0,3,2]")
            dpp("or_b32", acc, acc, acc, "quad_perm:[2,3,0,1]")
            a(f"v_cmp_ne_u32 vcc, 0, v{acc}")
        a("s_mov_b64 exec, vcc")
        loads()
        a(f"""s_mov_b64 exec, -1
        s_add_u32 s{sCNT}, s{sCNT}, 1
        s_cmp_lt_u32 s{sCNT}, {SPIN_LIMIT}
        s_cbranch_scc1 {name}
        s_waitcnt vmcnt(0)
        {name}_go:""")

    def xflag_store(base):
        a(f"""s_lshl_b32 s{sT1}, s{sG}, 7
        s_add_u32 s{sT1}, s{sT1}, {base}
        v_lshlrev_b32 v5, 10, v0
        s_mov_b64 exec, 0xff
        buffer_store_dword v30, v5, s[{sWS}:{sWS+3}], s{sT1} offen sc1
        s_mov_b64 exec, -1""")

    def xflag_poll(name, base, vo, tmp):
        a(f"""s_lshl_b32 s{sT1}, s{sG}, 10
        s_add_u32 s{sT1}, s{sT1}, {base}
        {name}:
        buffer_load_dword v{tmp}, v{vo}, s[{sWS}:{sWS+3}], s{sT1} offen sc1
        s_waitcnt vmcnt(0)
        v_cmp_ne_u32 vcc, s{sTAG}, v{tmp}""")
        poll_tail(name, name + "_go")

    def x2store():
        a("s_mov_b64 exec, 1")
        pub_store(30, 19, sHA, n=1)
        a("s_mov_b64 exec, -1")

    def oloads(G):
        for u in range(4):
            a(f"buffer_load_dwordx4 v[{G+4*u}:{G+4*u+3}], v{vGo}, s[{sWS}:{sWS+3}], s{sA} offen offset:{512*u} sc1")

    def ochain(G):
        for i in range(4):
            dpp("mul_f32", RR + i, 52, G + i, "quad_perm:[0,0,0,0]")
        for u in range(1, 4):
            for i in range(4):
                dpp("fmac_f32", RR + i, 52, G + 4 * u + i, f"quad_perm:[{u},{u},{u},{u}]")
    inK[0] = 'F'
    a(f"""L_frole:
    {'s_barrier' if fbar else ''}""")
    if fwarm is not None:
        a(f"buffer_load_dword v139, v140, s[{sWS}:{sWS+3}], 0 offen {fwarm}")
    a(f"""s_cmp_eq_u32 s{sROLE}, 2
    s_cbranch_scc1 L_now13
    {'s_sleep %d' % fwdelay if fwdelay else ''}""")
    wn[0] = fmid
    wloads(8 - fmid)
    a("L_now13:")
    a(f"""s_lshl_b32 s{sD}, s{sKC}, 8
    s_lshl_b32 s{sB}, s{sW}, 6
    s_add_u32 s{sD}, s{sD}, s{sB}
    v_and_b32 v7, 7, v0
    v_lshl_add_u32 v6, v7, 2, v{vI}
    v_lshlrev_b32 v6, 1, v6
    buffer_load_short_d16_hi v22, v6, s[{sX}:{sX+3}], s{sD} offen
    v_lshlrev_b32 v28, 7, v7
    v_mov_b32 v23, 0x3f803f80
    v_and_b32 v7, 1, v2
    v_lshlrev_b32 v7, 4, v7
    v_mov_b32 v6, 0xffff
    v_lshlrev_b32 v6, v7, v6
    v_and_b32 v23, v23, v6
    v_bfe_u32 v7, v2, 1, 2""")
    for i in range(4):
        a(f"v_cmp_eq_u32 vcc, {i}, v7")
        a(f"v_cndmask_b32 v{AS+i}, 0, v23, vcc")
        a(f"v_mov_b32 v{AS+4+i}, v{AS+i}")
    a(f"""s_lshl_b32 s{sA}, s{sKC}, 14
    s_lshl_b32 s{sB}, s{sW}, 7
    s_add_u32 s{sA}, s{sA}, s{sB}
    s_lshl_b32 s{sB}, s{sG}, 16
    {('s_add_u32 s%d, s%d, s%d' % (sA, sA, sB)) if hp8 else ''}
    s_add_u32 s{sA}, s{sA}, {HP8 if hp8 else HP}
    v_lshrrev_b32 v6, 3, v0
    v_and_b32 v7, 7, v0
    v_lshlrev_b32 v20, 11, v6
    v_lshl_add_u32 v20, v7, 4, v20
    s_lshl2_add_u32 s{sT0}, s{sT2}, s{sW}
    s_lshl_b32 s{sB}, s{sT0}, 4
    s_add_u32 s{sB}, s{sB}, {ST}
    v_and_b32 v5, 3, v0
    v_lshlrev_b32 v5, 4, v5
    v_bfe_u32 v4, v0, 2, 1
    v_lshl_add_u32 v5, v4, 13, v5
    v_bfe_u32 v4, v0, 4, 1
    v_lshl_add_u32 v5, v4, 12, v5
    v_bfe_u32 v4, v0, 3, 1
    v_lshl_add_u32 v5, v4, 7, v5
    v_bfe_u32 v4, v0, 5, 1
    v_lshl_add_u32 v5, v4, 6, v5
    s_lshl_b32 s{sC}, s{sCB}, 14
    s_and_b32 s{sD}, s{sT0}, 15
    s_lshl_b32 s{sD}, s{sD}, 8
    s_add_u32 s{sC}, s{sC}, s{sD}
    s_add_u32 s{sC}, s{sC}, {GP}""")
    a(f"""s_bfe_u32 s{sT0}, s{sS}, 0x20002
    s_and_b32 s{sT1}, s{sG}, 1
    {('s_lshl2_add_u32 s%d, s%d, s%d' % (sT0, sT1, sT0)) if fp2 else ('s_lshl1_add_u32 s%d, s%d, s%d' % (sT0, sT0, sT1))}
    s_lshr_b32 s{sT1}, s{sG}, 2
    s_lshl3_add_u32 s{sT0}, s{sT1}, s{sT0}      ; n>>1
    s_bfe_u32 s{sT1}, s{sG}, 0x10001            ; n&1
    s_lshl1_add_u32 s{sRN}, s{sT0}, s{sT1}      ; n
    s_lshl1_add_u32 s{sT1}, s{sKC}, s{sT1}
    s_lshl4_add_u32 s{sHA}, s{sT1}, s{sT0}      ; G
    s_lshl_b32 s{sXO}, s{sKC}, 5
    s_add_u32 s{sXO}, s{sXO}, s{sRN}
    s_lshl_b32 s{sXO}, s{sXO}, 3
    s_lshl_b32 s{sT0}, s{sHA}, 3
    v_lshlrev_b32 v132, 1, v{vI}""")
    for j in range(4):
        a(f"s_add_u32 s{sT3}, s{sT0}, {8*j}")
        a(f"v_mov_b32 v7, s{sT3}")
        a(f"v_alignbit_b32 v{128+j}, s{sTAG}, s{sTAG}, v7")
    if stamps and not fsleep:
        a("s_waitcnt vmcnt(0)")
        stamp(11)
    if xfl and fsleep:
        a(f"""s_lshl_b32 s{sT1}, s{sG}, 10
        s_add_u32 s{sT1}, s{sT1}, {XF1}
        s_sleep {fsleep}
        buffer_load_dword v29, v28, s[{sWS}:{sWS+3}], s{sT1} offen sc1
        s_waitcnt vmcnt(0)""")
        stamp(11)
        a(f"""v_cmp_ne_u32 vcc, s{sTAG}, v29
        s_cbranch_vccz L_fx2""")
    if xfl:
        xflag_poll("L_fx1", XF1, 28, 29)
        if fdelay: a(f"s_sleep {fdelay}")
        a("L_fx2:")
    stamp(7)
    HD = 52

    def hloads():
        for u in range(4):
            a(f"buffer_load_dwordx4 v[{HD+4*u}:{HD+4*u+3}], v20, s[{sWS}:{sWS+3}], s{sA} offen offset:{512*u} sc1")
    hloads()
    masked_poll("L_gpoll", hloads, 6, [HD + 4 * u + 3 for u in range(4)], [vT + 3] * 4)
    stamp(8)
    a(f"""v_pk_add_f32 v[{HD}:{HD+1}], v[{HD}:{HD+1}], v[{HD+4}:{HD+5}]
    v_pk_add_f32 v[{HD+2}:{HD+3}], v[{HD+2}:{HD+3}], v[{HD+6}:{HD+7}]
    v_pk_add_f32 v[{HD+8}:{HD+9}], v[{HD+8}:{HD+9}], v[{HD+12}:{HD+13}]
    v_pk_add_f32 v[{HD+10}:{HD+11}], v[{HD+10}:{HD+11}], v[{HD+14}:{HD+15}]
    v_pk_add_f32 v[{HD}:{HD+1}], v[{HD}:{HD+1}], v[{HD+8}:{HD+9}]
    v_pk_add_f32 v[{HD+2}:{HD+3}], v[{HD+2}:{HD+3}], v[{HD+10}:{HD+11}]
    v_and_b32 v22, s{sHI}, v22""")
    xreduce4(HD)
    dpp("add_f32", HD, HD, HD, "row_ror:8")
    round_bf16(HD, f"v{HD}")
    a(f"""v_add_f32 v{HD}, v22, v{HD}
    v_cvt_pk_bf16_f32 v{HD}, v{HD}, v{HD}
    v_and_b32 v22, s{sHI}, v{HD}
    s_cmp_eq_u32 s{sROLE}, 2
    s_cbranch_scc1 L_red
    v_readfirstlane_b32 s{sT0}, v22""")
    a(f"""v_subrev_f32 v6, s{sT0}, v22
    v_mul_f32 v7, v6, v6""")
    for k in (4, 2, 1):
        dpp("add_f32", 6, 6, 6, f"row_ror:{k}")
        dpp("add_f32", 7, 7, 7, f"row_ror:{k}")
    for ctl, rm in (("row_bcast:15", "0xa"), ("row_bcast:31", "0xc")):
        dpp("add_f32", 6, 6, 6, ctl, rm=rm)
        dpp("add_f32", 7, 7, 7, ctl, rm=rm)
    a(f"""v_mul_f32 v28, 0x3d000000, v6
    v_fma_f32 v29, -v28, v6, v7
    v_add_f32 v28, s{sT0}, v28
    v_mov_b32 v4, 0
    s_mov_b32 exec_lo, 0
    s_mov_b32 exec_hi, 0x80000000""")
    pub_store(28, 4, sB)
    a("s_mov_b64 exec, -1")
    stamp(9)
    gemv(HD, 8, WD, "0x3", DD)
    a(f"v_bfi_b32 v{DD+3}, s{sFF}, v{vT+3}, v{DD+3}")
    pub_store(DD, 5, sC)
    stamp(10)
    a("s_branch L_red")
    a(f".p2align {oalign}\nL_orole:")
    a(f"""s_lshl_b32 s{sA}, s{sT3}, 14
    s_add_u32 s{sA}, s{sA}, {OP}
    s_lshl_b32 s{sB}, s{sW}, 7
    s_add_u32 s{sA}, s{sA}, s{sB}
    s_lshl_b32 s{sB}, s{sT3}, {12 if ml8 else 9}
    s_add_u32 s{sB}, s{sB}, {ML8 if ml8 else ML}""")

    inK[0] = 'O'
    a(f"""s_lshl_b32 s{sC}, s{sW}, 10
    s_add_u32 s{sC}, s{sC}, {L_RED}
    v_lshl_add_u32 v22, v0, 4, s{sC}
    v_and_b32 v7, 1, v0
    v_lshlrev_b32 v7, 4, v7
    v_bfe_u32 v1, v0, 1, 4
    v_add_u32 v7, v7, v1
    v_lshlrev_b32 v7, 4, v7
    v_and_b32 v1, 31, v0
    v_lshlrev_b32 v1, 4, v1
    v_lshrrev_b32 v4, 5, v0
    v_lshl_add_u32 v1, v4, 16, v1""")
    wn[0] = nw_
    if coop:
        a("s_barrier")
        woloads(4)
    if wolate:
        a("s_barrier")
        woloads(8)
        if odelay: a(f"s_sleep {odelay}")
    if stamps and not wolate:
        a(f"s_waitcnt vmcnt({6 if coop else 2})")
        stamp(14)
        a("s_waitcnt vmcnt(0)")
        stamp(1)
    if owait:
        a(f"s_waitcnt vmcnt({2 if owait == 1 else 0})")
    if mcomb:
        mll = f"buffer_load_dwordx4 v[52:55], v{vMo}, s[{sWS}:{sWS+3}], s{sB} offen sc1"
        a(mll)
        oloads(GD)
        a("L_mpoll:\ns_waitcnt vmcnt(0)")
        a(f"v_xor_b32 v6, v{GD+3}, v{vTo_}")
        for u in range(1, 4):
            a(f"v_bitop3_b32 v6, v6, v{GD+4*u+3}, v{vTo_} bitop3:0xf6")
        a(f"""v_and_b32 v6, s{sFF}, v6
        v_cmp_ne_u32 s[{sT0}:{sT0+1}], s{sTAG}, v55
        v_bitop3_b32 v6, v6, v55, s{sTAG} bitop3:0xf6""".replace(f"s[{sT0}:{sT0+1}]", "s[96:97]"))
        dpp("or_b32", 6, 6, 6, "quad_perm:[1,0,3,2]")
        dpp("or_b32", 6, 6, 6, "quad_perm:[2,3,0,1]")
        a(f"""v_cmp_ne_u32 vcc, 0, v6
        s_cbranch_vccz L_mgo
        s_mov_b64 exec, vcc""")
        oloads(GD)
        a(f"""s_cmp_eq_u64 s[96:97], 0
        s_cbranch_scc1 L_mgo
        {mll}
        s_mov_b64 exec, -1
        s_add_u32 s{sCNT}, s{sCNT}, 1
        s_cmp_lt_u32 s{sCNT}, {SPIN_LIMIT}
        s_cbranch_scc1 L_mpoll
        s_waitcnt vmcnt(0)
        L_mgo:
        s_mov_b64 exec, -1""")
    else:
        a(f"""L_mpoll:
        buffer_load_dwordx4 v[52:55], v{vMo}, s[{sWS}:{sWS+3}], s{sB} offen sc1""")
        oloads(GD)
        a(f"""s_waitcnt vmcnt(4)
        v_cmp_ne_u32 vcc, s{sTAG}, v55""")
        poll_tail("L_mpoll", "L_mgo")
    if oearly:
        a("s_waitcnt vmcnt(0)")
        tagcheck(6, [GD + 4 * u + 3 for u in range(4)], [vTo_] * 4)
        dpp("or_b32", 6, 6, 6, "quad_perm:[1,0,3,2]")
        dpp("or_b32", 6, 6, 6, "quad_perm:[2,3,0,1]")
        a("v_cmp_ne_u32 vcc, 0, v6\ns_cbranch_vccz L_oe\ns_mov_b64 exec, vcc")
        oloads(GD)
        a("s_mov_b64 exec, -1\nL_oe:")
    if not mret: oloads(GE)
    stamp(13)
    if xfl and xpos == 13:
        a(f"""s_lshl2_add_u32 s{sT0}, s{sS}, s{sW}
        s_cmp_lg_u32 s{sT0}, 3
        s_cbranch_scc1 L_nx1""")
        xflag_store(XF1)
        a("L_nx1:")
    dpp("max_f32", 6, 52, 52, "quad_perm:[1,0,3,2]")
    dpp("max_f32", 6, 6, 6, "quad_perm:[2,3,0,1]")
    wave_red(6, sT0, op="max", steps=(8,))
    a(f"""v_subrev_f32 v52, s{sT0}, v52
    v_mul_f32 v52, s{sL2E}, v52
    v_exp_f32 v52, v52
    v_mul_f32 v6, v52, v53""")
    dpp("add_f32", 6, 6, 6, "quad_perm:[1,0,3,2]")
    dpp("add_f32", 6, 6, 6, "quad_perm:[2,3,0,1]")
    wave_red(6, sT0, steps=(8,))
    a(f"""v_rcp_f32 v6, s{sT0}
    v_mul_f32 v52, v52, v6""")
    if mret:
        masked_poll("L_opoll", lambda: oloads(GD), 6, [GD + 4 * u + 3 for u in range(4)], [vTo_] * 4)
        ochain(GD)
    else:
        a("L_opoll:\ns_waitcnt vmcnt(4)")
        tagcheck(6, [GD + 4 * u + 3 for u in range(4)], [vTo_] * 4)
        a("s_cbranch_vccz L_ogo")
        oloads(GD)
        a("s_waitcnt vmcnt(4)")
        tagcheck(6, [GE + 4 * u + 3 for u in range(4)], [vTo_] * 4)
        a("s_cbranch_vccz L_oge")
        oloads(GE)
        a(f"""s_add_u32 s{sCNT}, s{sCNT}, 1
        s_cmp_lt_u32 s{sCNT}, {SPIN_LIMIT}
        s_cbranch_scc1 L_opoll
        L_oge:""")
        ochain(GE)
        a("s_branch L_oj\nL_ogo:")
        ochain(GD)
    a("L_oj:")
    stamp(7)
    if xfl and xpos == 7:
        a(f"""s_lshl2_add_u32 s{sT0}, s{sS}, s{sW}
        s_cmp_lg_u32 s{sT0}, 3
        s_cbranch_scc1 L_nx1""")
        xflag_store(XF1)
        a("L_nx1:")
    xreduce4(RR)
    dpp("add_f32", RR, RR, RR, "row_ror:8")
    a(f"v_cvt_pk_bf16_f32 v{RR}, v{RR}, v{RR}")
    gemv(RR, 8, WD, "0xf", DD)
    a(f"""s_lshl_b32 s{sA}, s{sKC}, 5
    s_add_u32 s{sA}, s{sA}, s{sT3}
    s_lshl_b32 s{sA}, s{sA}, 9
    s_lshl_b32 s{sB}, s{sW}, 17
    s_add_u32 s{sA}, s{sA}, {HP8 if hp8 else HP}
    {('s_add_u32 s%d, s%d, s%d' % (sA, sA, sB)) if hp8 else ''}
    s_lshr_b32 s{sCB}, s{sS}, 2
    s_lshl3_add_u32 s{sCB}, s{sCB}, s{sG}
    s_lshl2_add_u32 s{sT2}, s{sCB}, s{sKC}
    ds_write_b128 v22, v[{DD}:{DD+3}]
    s_waitcnt lgkmcnt(0)
    s_barrier""")
    stamp(8)
    if xfl and xpos == 8:
        a(f"""s_lshl2_add_u32 s{sT0}, s{sS}, s{sW}
        s_cmp_lg_u32 s{sT0}, 3
        s_cbranch_scc1 L_nx1""")
        xflag_store(XF1)
        a("L_nx1:")
    if hp8:
        for w in range(4):
            a(f"ds_read_b128 v[{112+4*w}:{112+4*w+3}], v7 offset:{L_RED+1024*w}")
        sum4(112)
        for j in range(4):
            a(f"v_bfi_b32 v{112+j}, s{sFF}, v{vT+j}, v{112+j}")
        a(f"""buffer_store_dwordx4 v[112:115], v1, s[{sWS}:{sWS+3}], s{sA} offen sc1
        s_barrier""")
    else:
        a(f"""s_cmp_lg_u32 s{sW}, 0
        s_cbranch_scc1 L_onot0
        s_mov_b32 exec_hi, 0""")
        for w in range(4):
            a(f"ds_read_b128 v[{112+4*w}:{112+4*w+3}], v7 offset:{L_RED+1024*w}")
        sum4(112)
        for j in range(4):
            a(f"v_bfi_b32 v{112+j}, s{sFF}, v{vT+j}, v{112+j}")
        a(f"""buffer_store_dwordx4 v[112:115], v19, s[{sWS}:{sWS+3}], s{sA} offen sc1
        s_mov_b32 exec_hi, -1
        L_onot0:
        s_barrier""")
    stamp(9)
    a(f"""s_cmp_ge_u32 s{sCB}, 28
    s_cbranch_scc1 L_kdone
    s_lshr_b32 s{sA}, s{sKC}, 1
    s_and_b32 s{sB}, s{sKC}, 1
    s_lshl1_add_u32 s{sA}, s{sCB}, s{sA}
    s_lshl3_add_u32 s{sA}, s{sA}, s{sB}
    s_lshl_b32 s{sA}, s{sA}, 12
    s_lshl_b32 s{sB}, s{sW}, 8
    s_add_u32 s{sA}, s{sA}, s{sB}
    s_add_u32 s{pW2}, s{pW2}, s{sA}
    s_addc_u32 s{pW2+1}, s{pW2+1}, 0""")
    for t in range(4):
        a(f"global_load_dwordx4 v[{WD+4*t}:{WD+4*t+3}], v{vWo}, s[{pW2}:{pW2+1}] nt")
        if t < 3:
            a(f"v_add_u32 v{vWo}, 0x2000, v{vWo}")
    a(f"""L_f2:
    s_lshl_b32 s{sC}, s{sCB}, 8
    s_add_u32 s{sC}, s{sC}, {ST}
    v_lshlrev_b32 v21, 4, v2
    s_lshl_b32 s{sA}, s{sT2}, 12
    s_add_u32 s{sA}, s{sA}, {GP}
    s_lshl2_add_u32 s{sB}, s{sT2}, s{sW}
    s_lshl_b32 s{sD}, s{sB}, 9
    s_add_u32 s{sD}, s{sD}, {FP}
    """)
    if fp2:
        a(f"""s_lshr_b32 s{sD}, s{sT2}, 1
        s_lshl2_add_u32 s{sD}, s{sD}, s{sW}
        s_lshl_b32 s{sD}, s{sD}, 4
        s_and_b32 s{sB}, s{sT2}, 1
        s_add_u32 s{sD}, s{sD}, s{sB}
        s_lshl_b32 s{sD}, s{sD}, 6
        s_add_u32 s{sD}, s{sD}, {FP}
        v_lshrrev_b32 v4, 2, v0
        v_and_b32 v5, 3, v0
        v_lshlrev_b32 v5, 4, v5
        v_lshl_add_u32 v20, v4, 7, v5""")
    else:
        a("v_mov_b32 v20, v19")
    a(f"""
    s_lshl4_add_u32 s{sHA}, s{sG}, s{sS}
    s_lshl2_add_u32 s{sHA}, s{sHA}, s{sW}
    s_lshl_b32 s{sHA}, s{sHA}, 2
    s_add_u32 s{sHA}, s{sHA}, {FL2}
    v_and_b32 v6, 7, v0
    v_lshlrev_b32 v6, 7, v6
    s_lshl_b32 s{sB}, s{sW}, 10
    s_add_u32 s{sB}, s{sB}, s{sA}
    buffer_load_dword v7, v6, s[{sWS}:{sWS+3}], s{sB} offen sc1
    {'s_sleep %d' % ssleep if ssleep else ''}
    L_spoll:
    buffer_load_dwordx4 v[36:39], v21, s[{sWS}:{sWS+3}], s{sC} offen sc1""")
    GU = 64

    def uloads():
        for u in range(4):
            a(f"buffer_load_dwordx4 v[{GU+4*u}:{GU+4*u+3}], v19, s[{sWS}:{sWS+3}], s{sA} offen offset:{1024*u} sc1")
    a(f"""s_waitcnt vmcnt(0)
    v_cmp_ne_u32 vcc, s{sTAG}, v39""")
    poll_tail("L_spoll", "L_sgo")
    uloads()
    if x2pos == 10:
        x2store()
    stamp(10)
    dpp("add_f32", 6, 36, 36, "row_ror:8")
    for k in (4, 2, 1):
        dpp("add_f32", 6, 6, 6, f"row_ror:{k}")
    a(f"""v_mul_f32 v6, 0x3d800000, v6
    v_sub_f32 v36, v36, v6
    v_mul_f32 v36, v36, v36
    v_fmac_f32 v37, 0x42000000, v36""")
    for k in (8, 4, 2, 1):
        dpp("add_f32", 37, 37, 37, f"row_ror:{k}")
    round_bf16(6, "v6")
    a(f"""v_mul_f32 v37, 0x3b000000, v37
    v_sub_f32 v6, 0, v6""")
    round_bf16(37, "v37")
    a(f"v_add_f32 v37, {hex(EPS)}, v37")
    round_bf16(37, "v37")
    a(f"v_sqrt_f32 v37, v37")
    round_bf16(37, "v37")
    a(f"""v_rcp_f32 v37, v37
    """)
    masked_poll("L_upoll", uloads, 7, [GU + 4 * u + 3 for u in range(4)], [vT + 3] * 4)
    if x2pos == 11:
        x2store()
    stamp(11)
    a(f"""v_pk_add_f32 v[32:33], v[{GU}:{GU+1}], v[{GU+4}:{GU+5}]
    v_pk_add_f32 v[34:35], v[{GU+2}:{GU+3}], v[{GU+6}:{GU+7}]
    v_pk_add_f32 v[{GU+8}:{GU+9}], v[{GU+8}:{GU+9}], v[{GU+12}:{GU+13}]
    v_pk_add_f32 v[{GU+10}:{GU+11}], v[{GU+10}:{GU+11}], v[{GU+14}:{GU+15}]
    v_pk_add_f32 v[32:33], v[32:33], v[{GU+8}:{GU+9}]
    v_pk_add_f32 v[34:35], v[34:35], v[{GU+10}:{GU+11}]""")
    xreduce4(32)
    dpp("fmac_f32", 32, 32, 6, "row_shl:4")
    a(f"v_mul_f32 v33, v32, v37")
    round_bf16(33, "v33")
    a(f"""v_mul_f32 v34, {hex(LOG2E | 0x80000000)}, v33
    v_exp_f32 v34, v34
    v_add_f32 v34, 1.0, v34
    v_rcp_f32 v34, v34
    v_mul_f32 v34, v33, v34""")
    round_bf16(34, "v34")
    dpp("mul_f32", 34, 33, 34, "row_shl:8")
    a(f"v_cvt_pk_bf16_f32 v34, v34, v34")
    gemv(34, 4, WD, "0xf", DD)
    a(f"s_mov_b32 exec_hi, 0")
    for j in range(4):
        a(f"v_bfi_b32 v{DD+j}, s{sFF}, v{vT+j}, v{DD+j}")
    a(f"""buffer_store_dwordx4 v[{DD}:{DD+3}], v20, s[{sWS}:{sWS+3}], s{sD} offen sc1
    s_mov_b32 exec_hi, -1""")
    if x2pos == 12:
        x2store()
    stamp(12)
    a("s_branch L_kdone")

    inK[0] = 'F'
    a("L_red:")
    if wb1 or wb2:
        a(f"""s_lshl2_add_u32 s{sT0}, s{sS}, s{sW}
        s_cmpk_lg_u32 s{sT0}, 67
        s_cbranch_scc1 L_nwb""")
        if wb2:
            a(f"""s_lshl_b32 s{sD}, s{sG}, 8
            s_add_u32 s{sD}, s{sD}, {FL2}
            s_cmp_lt_u32 s{sG}, 4
            s_cselect_b32 s{sT1}, 63, 47
            v_min_u32 v28, s{sT1}, v0
            v_lshlrev_b32 v28, 2, v28""")
            flag_poll("L_wbp", 28, sD, 29)
        a("buffer_wbl2 sc1\ns_waitcnt vmcnt(0)\nL_nwb:")
    a(f"""s_lshr_b32 s{sT0}, s{sRN}, 3
    s_cmp_lg_u32 s{sT0}, s{sW}
    s_cbranch_scc1 L_kdone
    """)
    if fp2:
        a(f"""s_lshr_b32 s{sA}, s{sHA}, 2
        s_lshl_b32 s{sA}, s{sA}, 3
        s_and_b32 s{sB}, s{sHA}, 3
        s_add_u32 s{sA}, s{sA}, s{sB}
        s_lshl_b32 s{sA}, s{sA}, 4
        v_lshrrev_b32 v6, 1, v0
        v_lshlrev_b32 v6, 12, v6
        v_and_b32 v7, 1, v0
        v_lshl_add_u32 v6, v7, 6, v6""")
    else:
        a(f"""s_lshl_b32 s{sA}, s{sHA}, 4
        v_lshlrev_b32 v6, 11, v0""")
    a(f"""s_add_u32 s{sA}, s{sA}, {FP}
    s_add_u32 s{sB}, s{sA}, {64*2048}
    s_lshl_b32 s{sD}, s{sG}, 8
    s_add_u32 s{sD}, s{sD}, {FL2}
    s_cmp_lt_u32 s{sG}, 4
    s_cselect_b32 s{sT1}, 63, 47
    v_min_u32 v28, s{sT1}, v0
    v_lshlrev_b32 v28, 2, v28
    s_and_b32 s{sT0}, s{sRN}, 7
    s_lshl_b32 s{sRN}, 0x00010001, s{sT0}""")
    for j in range(4):
        a(f"v_and_b32 v{36+j}, s{sFF}, v{128+j}")
    if rsleep: a(f"s_sleep {rsleep}")
    flag_poll("L_rx2", 28, sD, 29)
    if rdelay:
        a(f"s_sleep {rdelay}")
    stamp(14)

    def floads():
        a(f"""buffer_load_dwordx4 v[32:35], v6, s[{sWS}:{sWS+3}], s{sA} offen sc1
        s_and_b32 exec_hi, exec_hi, 0xffff
        buffer_load_dwordx4 v[36:39], v6, s[{sWS}:{sWS+3}], s{sB} offen sc1""")
    floads()
    a("s_mov_b32 exec_hi, -1")
    masked_poll("L_fpoll", floads, 7, list(range(32, 40)), [128, 129, 130, 131] * 2, quad=False)
    stamp(1)
    a(f"""v_pk_add_f32 v[32:33], v[32:33], v[36:37]
    v_pk_add_f32 v[34:35], v[34:35], v[38:39]""")
    xreduce4(32)
    for k in (8, 4, 2, 1):
        dpp("add_f32", 32, 32, 32, f"row_ror:{k}")
    round_bf16(32, "v32")
    a(f"""v_add_f32 v32, v22, v32
    v_cvt_pk_bf16_f32 v32, v32, v32
    s_mov_b32 exec_lo, s{sRN}
    s_mov_b32 exec_hi, s{sRN}
    buffer_store_short v32, v132, s[{sOUT}:{sOUT+3}], s{sXO} offen
    s_cmpk_lg_u32 s2, 128
    s_cbranch_scc1 L_noep
    s_mov_b64 exec, 1
    buffer_store_dword v30, v19, s[{sWS}:{sWS+3}], 0 offen sc1
    L_noep:""")
    stamp(2)
    if lite:
        a(f"""s_memrealtime s[72:73]
        s_mov_b64 exec, 1
        s_lshl_b32 s{sA}, s2, 3
        s_add_u32 s{sA}, s{sA}, {STAMPS}
        s_waitcnt lgkmcnt(0)
        v_mov_b32 v4, s70
        v_mov_b32 v5, s72
        buffer_store_dwordx2 v[4:5], v19, s[{sWS}:{sWS+3}], s{sA} offen""")
    if cprobe:
        a(f"""s_cmpk_lg_u32 s2, 128
        s_cbranch_scc1 L_kdone
        s_memrealtime s[{sSTAMP0+4}:{sSTAMP0+5}]
        s_load_dwordx2 s[94:95], s[0:1], 80
        s_mov_b32 s96, 0
        s_waitcnt lgkmcnt(0)
        s_atomic_add s96, s[94:95], 128 glc
        s_waitcnt lgkmcnt(0)
        s_mul_i32 s{sA}, s96, 20
        L_probe3:
        s_memrealtime s[{sC}:{sD}]
        s_waitcnt lgkmcnt(0)
        s_sub_u32 s{sB}, s{sC}, s{sSTAMP0+4}
        s_cmp_lt_u32 s{sB}, s{sA}
        s_cbranch_scc1 L_probe3""")
    if gprobe is not None:
        a(f"""s_cmpk_lg_u32 s2, 128
        s_cbranch_scc1 L_kdone
        s_memrealtime s[{sSTAMP0+4}:{sSTAMP0+5}]
        s_load_dwordx2 s[94:95], s[0:1], 80
        s_mov_b32 s96, 0
        s_mov_b32 s93, 0
        s_waitcnt lgkmcnt(0)
        s_atomic_umax s96, s[94:95], 0 glc
        s_atomic_umax s93, s[94:95], 64 glc
        s_waitcnt lgkmcnt(0)
        s_not_b32 s93, s93
        s_sub_u32 s{sA}, s96, s93
        s_lshl_b32 s{sA}, s{sA}, 3
        s_min_u32 s{sA}, s{sA}, 10000
        L_probe2:
        s_memrealtime s[{sC}:{sD}]
        s_waitcnt lgkmcnt(0)
        s_sub_u32 s{sB}, s{sC}, s{sSTAMP0+4}
        s_cmp_lt_u32 s{sB}, s{sA}
        s_cbranch_scc1 L_probe2""")
    if probe is not None:
        a(f"""s_cmpk_lg_u32 s2, 128
        s_cbranch_scc1 L_kdone
        s_memrealtime s[{sSTAMP0+4}:{sSTAMP0+5}]
        s_waitcnt lgkmcnt(0)
        s_sub_u32 s{sA}, s{sSTAMP0+2*probe}, s{sSTAMP0}
        s_lshl_b32 s{sA}, s{sA}, 3
        s_min_u32 s{sA}, s{sA}, 10000
        L_probe:
        s_memrealtime s[{sC}:{sD}]
        s_waitcnt lgkmcnt(0)
        s_sub_u32 s{sB}, s{sC}, s{sSTAMP0+4}
        s_cmp_lt_u32 s{sB}, s{sA}
        s_cbranch_scc1 L_probe""")
    a("L_kdone:")
    flush_stamps()
    a("s_endpgm")
    for s_ in slow:
        a(s_)
    a("L_end:")
    body = pad(a.text(), verbose=False)
    if al8:
        body = align(body, verbose=True)
    return single_file(body, 256, 320, LDS_BYTES, 168, sgpr=100)


if __name__ == "__main__":
    import json
    variants = json.loads(sys.argv[1]) if len(sys.argv) > 1 else {"k8": {}}
    for n, kw in variants.items():
        open(n + ".s", "w").write(gen(**kw))
        if "probe" not in kw and "gprobe" not in kw and "cprobe" not in kw:
            open(n + "_st.s", "w").write(gen(stamps=True, **kw))
            open(n + "_l.s", "w").write(gen(lite=True, **kw))
```
